```python
import torch

def _softmax(x, axis=-1):
    return torch.softmax(x, dim=axis)
def _gelu(x):
    return torch.nn.functional.gelu(x, approximate="tanh")
def _silu(x):
    return torch.nn.functional.silu(x)
def _sigmoid(x):
    return torch.sigmoid(x)
def _layernorm(x, axis=-1, eps=1e-5):
    m = x.mean(dim=axis, keepdim=True)
    v = x.var(dim=axis, keepdim=True, unbiased=False)
    return (x - m) / torch.sqrt(v + eps)
def _scatter_add(tgt, idx, src, axis=0):
    return tgt.clone().index_add_(axis, idx, src)
def _segment_sum(src, seg, n):
    out = torch.zeros((n,) + src.shape[1:], dtype=src.dtype)
    return out.index_add_(0, seg, src)
def _pad(x, pw):
    flat = tuple(v for pair in reversed(pw) for v in pair)
    return torch.nn.functional.pad(x, flat)

kernel_name = 'standalone__kv_cache_quant_int4_int2_kv_with_per_channel_or_per_token_scales__sampling'

def setup_inputs():

    _w = (lambda a: (lambda t: t.to(torch.bfloat16) if t.is_floating_point() else t)(torch.as_tensor(a)))
    B = 16
    Sq = 1
    Skv = 4096
    Hq = 32
    Hkv = 8
    Dh = 128
    bits = 8
    G = 128
    if G <= 0 or G >= Skv:
        G = max(1, Skv // 2)
    Skv = (Skv // G) * G
    ngk = Skv // G
    qmax = (1 << bits) - 1
    return {
        "q": _w((lambda *s: torch.randn(*s, dtype=torch.bfloat16) * 0.4)(B, Hq, Sq, Dh)),
        "qk": _w(torch.randint(0, qmax + 1, (B, Hkv, Skv, Dh)).to(torch.int32)),
        "qv": _w(torch.randint(0, qmax + 1, (B, Hkv, Skv, Dh)).to(torch.int32)),
        "k_scales": _w(torch.abs((lambda *s: torch.randn(*s, dtype=torch.bfloat16) * 0.4)(B, Hkv, ngk, Dh)) * 0.05 + 0.02),
        "k_zeros": _w((lambda *s: torch.randn(*s, dtype=torch.bfloat16) * 0.4)(B, Hkv, ngk, Dh) + float(qmax) / 2.0),
        "v_scales": _w(torch.abs((lambda *s: torch.randn(*s, dtype=torch.bfloat16) * 0.05)(B, Hkv, Skv, 1)) * 0.05 + 0.02),
        "v_zeros": _w((lambda *s: torch.randn(*s, dtype=torch.bfloat16) * 0.05)(B, Hkv, Skv, 1) + float(qmax) / 2.0),
    }

def reference(q, qk, qv, k_scales, k_zeros, v_scales, v_zeros):
    B, Hq, Sq, Dh = q.shape
    Hkv, Skv = qk.shape[1], qk.shape[2]
    ngk = k_scales.shape[2]
    G = Skv // ngk
    ks = (lambda x, n, axis: torch.repeat_interleave(x, n, dim=axis))(k_scales, G, axis=2)
    kz = (lambda x, n, axis: torch.repeat_interleave(x, n, dim=axis))(k_zeros, G, axis=2)
    k = ((lambda x, dt: x.to(dt))(qk, q.dtype) - kz) * ks
    v = ((lambda x, dt: x.to(dt))(qv, q.dtype) - v_zeros) * v_scales
    rep = Hq // Hkv
    if rep > 1:
        k = (lambda x, n, axis: torch.repeat_interleave(x, n, dim=axis))(k, rep, axis=1)
        v = (lambda x, n, axis: torch.repeat_interleave(x, n, dim=axis))(v, rep, axis=1)
    scale = float(Dh) ** -0.5
    logits = torch.einsum("bhqd,bhkd->bhqk", q, k) * scale
    p = _softmax(logits, axis=-1)
    o = torch.einsum("bhqk,bhkd->bhqd", p, v)
    return o
```

```python
import struct, sys, json
KNAME = "standalone__kv_cache_quant_int4_int2_kv_with_per_channel_or_per_token_scales__sampling_kernel"
HEADER = open("standalone__kv_cache_quant_int4_int2_kv_with_per_channel_or_per_token_scales__sampling.s.ref").read().split("; Override launch")[0]
def f32(x): return "0x%08x" % struct.unpack("<I", struct.pack("<f", x))[0]
QSCALE = f32((128.0 ** -0.5) * 1.4426950408889634)
LDS_QP, LDS_C, LDS_VS, LDS_VZ, LDS_O, LDS_ML = 0, 0x4000, 0x4400, 0x5400, 0x6400, 0x8400

def gen(name=KNAME, D=2, lds=90112, flags="nt", pairmode=0, stamps=False, nvgpr=None):
    NW = 4; NSTEP = 32
    L = []; a = L.append
    a(HEADER.rstrip())
    a(f"; @launch grid=(256,1,1) block=(256,1,1) lds={lds}")
    a('.amdgcn_target "amdgcn-amd-amdhsa--gfx950"\n.text')
    a(f".globl {name}\n.p2align 8\n.type {name},@function\n{name}:")
    vKoff, vVoff, vQP, vC, vVS = 1, 2, 3, 4, 5
    vM, vL, vCc, vBias = 6, 7, 8, 9
    S = 10; P = 14; VSr = 16; VZr = 18; T = 20
    QP = 28; PK = 44; O = 60; Z = 92; RAW = 96
    def Kr(b): return RAW + 64*b
    def Vr(b): return RAW + 64*b + 32
    nv = RAW + 64*D
    assert nv <= 256
    def r4(x): return f"v[{x}:{x+3}]"
    def r2(x): return f"v[{x}:{x+1}]"
    sK, sV, sG, sWS, sOut, sDbg = 40, 44, 48, 52, 56, 60
    sPair, sHalf, sSo, sW = 33, 34, 36, 3
    def srd(d, lo, n):
        a(f"  s_mov_b32 s{d}, s{lo}\n  s_and_b32 s{d+1}, s{lo+1}, 0xffff\n  s_mov_b32 s{d+2}, {n}\n  s_mov_b32 s{d+3}, 0x20000")
    a("  s_cmp_ge_u32 s2, 256\n  s_cbranch_scc1 L_end")
    if stamps: a("  s_memrealtime s[70:71]")
    a("  s_load_dwordx16 s[4:19], s[0:1], 0\n  s_load_dwordx4 s[20:23], s[0:1], 64")
    a("  v_lshrrev_b32 v1, 6, v0\n  v_and_b32 v0, 63, v0")
    if pairmode == 0: a(f"  s_lshr_b32 s{sPair}, s2, 1\n  s_and_b32 s{sHalf}, s2, 1")
    else:             a(f"  s_and_b32 s{sPair}, s2, 127\n  s_lshr_b32 s{sHalf}, s2, 7")
    a(f"  v_readfirstlane_b32 s{sW}, v1")
    a(f"  v_and_b32 v{T}, 15, v0\n  v_lshrrev_b32 v{T+1}, 4, v0")
    a(f"  v_lshlrev_b32 v{vKoff}, 9, v{T}\n  v_lshl_add_u32 v{vKoff}, v{T+1}, 4, v{vKoff}")
    a(f"  v_lshlrev_b32 v{vVoff}, 4, v{T}\n  v_lshl_add_u32 v{vVoff}, v{T+1}, 11, v{vVoff}")
    a(f"  s_lshl_b32 s35, s{sPair}, 1\n  s_add_u32 s35, s35, s{sHalf}")
    a(f"  s_lshl_b32 s{sSo}, s35, 20\n  s_lshl_b32 s37, s{sW}, 13\n  s_add_u32 s{sSo}, s{sSo}, s37")
    a(f"  v_lshrrev_b32 v{T+2}, 2, v{T}\n  v_and_b32 v{T+3}, 3, v{T}")
    a(f"  v_lshlrev_b32 v{T+4}, 6, v{T+2}\n  v_lshl_add_u32 v{T+4}, v{T+3}, 3, v{T+4}")
    a(f"  v_lshl_add_u32 v{T+5}, v{T+1}, 8, v{T+4}")
    a(f"  v_lshlrev_b32 v{T+6}, 4, v0")
    a(f"  s_lshl_b32 s38, s35, 12\n  s_lshl_b32 s37, s{sW}, 10\n  s_add_u32 s38, s38, s37")
    a(f"  s_lshl_b32 s39, s{sPair}, 10")
    a("  s_waitcnt lgkmcnt(0)")
    KS, KZ, Q = QP, QP+4, PK
    srd(24, 10, 1 << 20); srd(28, 12, 1 << 20)
    srd(sG, 4, 1 << 17)
    a(f"  buffer_load_dwordx2 {r2(KS)}, v{T+5}, s[24:27], s38 offen\n  buffer_load_dwordx2 {r2(KS+2)}, v{T+5}, s[24:27], s38 offen offset:32")
    a(f"  buffer_load_dwordx2 {r2(KZ)}, v{T+5}, s[28:31], s38 offen\n  buffer_load_dwordx2 {r2(KZ+2)}, v{T+5}, s[28:31], s38 offen offset:32")
    for h in range(4):
        a(f"  buffer_load_dwordx2 {r2(Q+4*h)}, v{T+4}, s[{sG}:{sG+3}], s39 offen offset:{h*256}")
        a(f"  buffer_load_dwordx2 {r2(Q+4*h+2)}, v{T+4}, s[{sG}:{sG+3}], s39 offen offset:{h*256+32}")
    srd(64, 14, 1 << 20); srd(72, 16, 1 << 20)
    a(f"  s_add_u32 m0, s37, {LDS_VS}\n  s_nop 0\n  buffer_load_dwordx4 v{T+6}, s[64:67], s38 offen lds")
    a(f"  s_add_u32 m0, s37, {LDS_VZ}\n  s_nop 0\n  buffer_load_dwordx4 v{T+6}, s[72:75], s38 offen lds")
    srd(sK, 6, 1 << 28); srd(sV, 8, 1 << 28)
    def issueK(b):
        for n in range(8):
            a(f"  buffer_load_dwordx4 {r4(Kr(b)+4*n)}, v{vKoff}, s[{sK}:{sK+3}], s{sSo} offen offset:{64*n} {flags}")
    def issueV(b):
        for n in range(8):
            a(f"  buffer_load_dwordx4 {r4(Vr(b)+4*n)}, v{vVoff}, s[{sV}:{sV+3}], s{sSo} offen offset:{(n>>1)*512+(n&1)*256} {flags}")
        a(f"  s_add_u32 s{sSo}, s{sSo}, {NW*8192}")
    for b in range(D):
        issueK(b); issueV(b)
    srd(sWS, 22, 1 << 21); srd(sOut, 18, 1 << 17); srd(sDbg, 20, 256)
    a(f"  v_and_b32 v{vC}, 3, v0\n  v_lshlrev_b32 v{vQP}, 6, v{vC}\n  v_lshl_add_u32 v{vQP}, v{T+1}, 4, v{vQP}")
    a(f"  v_lshlrev_b32 v{vC}, 2, v{vC}\n  v_add_u32 v{vC}, {LDS_C}, v{vC}")
    a(f"  s_lshl_b32 s37, s{sW}, 5\n  s_add_u32 s37, s37, {LDS_VS}\n  v_lshlrev_b32 v{vVS}, 3, v{T+1}\n  v_add_u32 v{vVS}, s37, v{vVS}")
    a(f"  s_lshl_b32 s37, s{sW}, 2\n  v_add_u32 v{T+7}, s37, v{T+1}")
    a(f"  v_lshlrev_b32 v{T+4}, 10, v{T+7}\n  v_lshl_add_u32 v{T+4}, v{T+2}, 8, v{T+4}\n  v_lshl_add_u32 v{T+4}, v{T+3}, 4, v{T+4}")
    a(f"  v_lshlrev_b32 v{T+5}, 4, v{T+7}\n  v_add_u32 v{T+5}, {LDS_C}, v{T+5}")
    a(f"  s_mov_b32 s37, {QSCALE}\n  s_mov_b32 s76, 0xffff0000")
    a(f"  s_waitcnt vmcnt({16*D})")
    A_, B_, C_ = O, O+8, O+16
    def unpack(dst, src, n):
        for i in range(n):
            a(f"  v_lshlrev_b32 v{dst+2*i}, 16, v{src+i}\n  v_and_b32 v{dst+2*i+1}, s76, v{src+i}")
    unpack(A_, KS, 4); unpack(B_, KZ, 4)
    for i in range(8): a(f"  v_mul_f32 v{A_+i}, s37, v{A_+i}")
    CH = S
    for h in range(4):
        unpack(C_, Q+4*h, 4)
        for i in range(8): a(f"  v_mul_f32 v{C_+i}, v{C_+i}, v{A_+i}")
        for i in range(4): a(f"  v_cvt_pk_bf16_f32 v{Q+4*h+i}, v{C_+2*i}, v{C_+2*i+1}")
        a(f"  ds_write_b128 v{T+4}, {r4(Q+4*h)} offset:{LDS_QP+h*64}")
        unpack(C_, Q+4*h, 4)
        a(f"  v_mul_f32 v{CH+h}, v{C_}, v{B_}")
        for i in range(1, 8): a(f"  v_fmac_f32 v{CH+h}, v{C_+i}, v{B_+i}")
    for rr in (8, 4, 2, 1):
        a("  s_nop 1")
        for h in range(4): a(f"  v_add_f32_dpp v{CH+h}, v{CH+h}, v{CH+h} row_ror:{rr} row_mask:0xf bank_mask:0xf")
    a(f"  ds_write_b128 v{T+5}, {r4(CH)}")
    for i in range(36): a(f"  v_mov_b32 v{O+i}, 0")
    a(f"  v_mov_b32 v{vM}, 0xff7fffff\n  v_mov_b32 v{vL}, 0")
    a("  s_waitcnt lgkmcnt(0)\n  s_barrier")
    def readQP():
        for m in range(4): a(f"  ds_read_b128 {r4(QP+4*m)}, v{vQP} offset:{LDS_QP+m*256}")
        a(f"  ds_read_b32 v{vCc}, v{vC}")
        a(f"  v_add_u32 v{vQP}, 1024, v{vQP}\n  v_add_u32 v{vC}, 16, v{vC}")
    readQP()
    lab = [0]
    def step(b, par, issue, wK, wV, nextgroup):
        a(f"  ds_read_b64 {r2(VSr)}, v{vVS} offset:{par*128}\n  ds_read_b64 {r2(VZr)}, v{vVS} offset:{par*128+LDS_VZ-LDS_VS}")
        a(f"  s_waitcnt vmcnt({wK})")
        k = Kr(b)
        for n in range(8):
            for e in range(4): a(f"  v_cvt_f32_i32 v{k+4*n+e}, v{k+4*n+e}")
            a(f"  v_cvt_pk_bf16_f32 v{PK+2*n}, v{k+4*n}, v{k+4*n+1}\n  v_cvt_pk_bf16_f32 v{PK+2*n+1}, v{k+4*n+2}, v{k+4*n+3}")
        if issue: issueK(b)
        else: a("  s_nop 1")
        a("  s_waitcnt lgkmcnt(0)")
        for m in range(4):
            a(f"  v_mfma_f32_16x16x32_bf16 {r4(S)}, {r4(PK+4*m)}, {r4(QP+4*m)}, {'0' if m == 0 else r4(S)}")
        unpack(T, VSr, 2)
        a("  s_nop 4")
        a(f"  v_max3_f32 v{T+4}, v{S}, v{S+1}, v{S+2}\n  v_max_f32 v{T+4}, v{T+4}, v{S+3}\n  v_sub_f32 v{T+4}, v{T+4}, v{vCc}")
        lab[0] += 1; lb = f"L_nr{lab[0]}"
        a(f"  v_cmp_gt_f32 vcc, v{T+4}, v{vM}\n  s_cbranch_vccz {lb}")
        a(f"  v_mov_b32 v{T+5}, v{T+4}\n  s_nop 1\n  v_permlane16_swap_b32 v{T+4}, v{T+5}\n  v_max_f32 v{T+4}, v{T+4}, v{T+5}")
        a(f"  v_mov_b32 v{T+5}, v{T+4}\n  s_nop 1\n  v_permlane32_swap_b32 v{T+4}, v{T+5}\n  v_max3_f32 v{T+4}, v{T+4}, v{T+5}, v{vM}")
        a(f"  v_sub_f32 v{T+5}, v{vM}, v{T+4}\n  v_exp_f32 v{T+5}, v{T+5}\n  v_mov_b32 v{vM}, v{T+4}\n  v_mul_f32 v{vL}, v{vL}, v{T+5}")
        for i in range(36): a(f"  v_mul_f32 v{O+i}, v{O+i}, v{T+5}")
        a(f"{lb}:")
        a(f"  v_add_f32 v{vBias}, v{vCc}, v{vM}")
        for i in range(4): a(f"  v_sub_f32 v{S+i}, v{S+i}, v{vBias}")
        if nextgroup: readQP()
        for i in range(4): a(f"  v_exp_f32 v{S+i}, v{S+i}")
        a(f"  v_add_f32 v{T+4}, v{S}, v{S+1}")
        for i in range(3): a(f"  v_mul_f32 v{T+i}, v{T+i}, v{S+i}")
        a(f"  v_add_f32 v{T+5}, v{S+2}, v{S+3}\n  v_mul_f32 v{T+3}, v{T+3}, v{S+3}")
        a(f"  v_add_f32 v{T+4}, v{T+4}, v{T+5}\n  v_cvt_pk_bf16_f32 v{P}, v{T}, v{T+1}\n  v_cvt_pk_bf16_f32 v{P+1}, v{T+2}, v{T+3}\n  v_add_f32 v{vL}, v{vL}, v{T+4}")
        a(f"  s_waitcnt vmcnt({wV})")
        v = Vr(b)
        for hf in range(2):
            for s in range(4):
                for e in range(4): a(f"  v_cvt_f32_i32 v{v+4*(2*s+hf)+e}, v{v+4*(2*s+hf)+e}")
            for e in range(4):
                for sp in range(2):
                    a(f"  v_cvt_pk_bf16_f32 v{PK+2*(4*hf+e)+sp}, v{v+4*(4*sp+hf)+e}, v{v+4*(4*sp+2+hf)+e}")
        if issue: issueV(b)
        else: a("  s_nop 1")
        a(f"  v_mfma_f32_16x16x16_bf16 {r4(Z)}, {r2(VZr)}, {r2(P)}, {r4(Z)}")
        for x in range(8):
            a(f"  v_mfma_f32_16x16x16_bf16 {r4(O+4*x)}, {r2(PK+2*x)}, {r2(P)}, {r4(O+4*x)}")
        if par == 1: a(f"  v_add_u32 v{vVS}, 256, v{vVS}")
    U = 2 if D in (1, 2) else 2*D
    nmain = (NSTEP - D)//U*U
    full = 8*(2*D-1)
    a(f"  s_mov_b32 s77, {nmain//U}\nL_loop:")
    for t in range(U): step(t % D, t & 1, True, full, full, t & 1)
    a("  s_sub_u32 s77, s77, 1\n  s_cmp_lg_u32 s77, 0\n  s_cbranch_scc1 L_loop")
    for t in range(nmain, NSTEP):
        issue = t + D < NSTEP
        if issue: wK = wV = full
        else:
            rem = NSTEP - t
            wK = 8*(2*rem-1); wV = 8*(2*rem-2)
        step(t % D, t & 1, issue, wK, wV, (t & 1) and t+1 < NSTEP)
    a(f"  v_mov_b32 v{T}, v{vL}\n  s_nop 1\n  v_permlane16_swap_b32 v{vL}, v{T}\n  v_add_f32 v{vL}, v{vL}, v{T}")
    a(f"  v_mov_b32 v{T}, v{vL}\n  s_nop 1\n  v_permlane32_swap_b32 v{vL}, v{T}\n  v_add_f32 v{vL}, v{vL}, v{T}")
    a(f"  v_and_b32 v{T}, 15, v0\n  v_lshrrev_b32 v{T+1}, 4, v0\n  s_lshl_b32 s37, s{sW}, 11\n  s_add_u32 s37, s37, {LDS_O}")
    a(f"  v_lshlrev_b32 v{T+2}, 9, v{T}\n  v_lshl_add_u32 v{T+2}, v{T+1}, 6, v{T+2}\n  v_add_u32 v{T+2}, s37, v{T+2}")
    a(f"  s_lshl_b32 s37, s{sW}, 5\n  s_add_u32 s37, s37, {LDS_ML}\n  v_lshlrev_b32 v{T+3}, 3, v{T}\n  v_add_u32 v{T+3}, s37, v{T+3}")
    a(f"  v_cmp_gt_u32 vcc, 4, v{T}")
    R = RAW
    for hf in range(2):
        for r in range(4):
            for e in range(4): a(f"  v_sub_f32 v{R+16*hf+4*r+e}, v{O+16*hf+4*e+r}, v{Z}")
    a("  s_and_saveexec_b64 s[78:79], vcc")
    for hf in range(2):
        for r in range(4): a(f"  ds_write_b128 v{T+2}, {r4(R+16*hf+4*r)} offset:{hf*256+r*16}")
    a(f"  ds_write_b64 v{T+3}, {r2(vM)}")
    a("  s_mov_b64 exec, s[78:79]\n  s_waitcnt lgkmcnt(0)\n  s_barrier")
    a(f"  s_cmp_lg_u32 s{sW}, 0\n  s_cbranch_scc1 L_end")
    a(f"  v_lshlrev_b32 v{T+2}, 5, v0\n  v_lshlrev_b32 v{T+3}, 3, v{T+1}")
    ML = QP
    for w in range(4): a(f"  ds_read_b64 {r2(ML+2*w)}, v{T+3} offset:{LDS_ML+w*32}")
    for w in range(4): a(f"  ds_read_b128 {r4(R+8*w)}, v{T+2} offset:{LDS_O+w*2048}\n  ds_read_b128 {r4(R+8*w+4)}, v{T+2} offset:{LDS_O+w*2048+16}")
    a(f"  v_lshlrev_b32 v{T+6}, 4, v0\n  v_lshlrev_b32 v{T+7}, 3, v0\n  s_lshl_b32 s38, s35, 12\n  s_xor_b32 s39, s38, 4096")
    a("  s_waitcnt lgkmcnt(8)")
    a(f"  v_max3_f32 v{vM}, v{ML}, v{ML+2}, v{ML+4}\n  v_max_f32 v{vM}, v{vM}, v{ML+6}")
    for w in range(4): a(f"  v_sub_f32 v{ML+2*w}, v{ML+2*w}, v{vM}")
    for w in range(4): a(f"  v_exp_f32 v{ML+2*w}, v{ML+2*w}")
    a(f"  s_nop 0\n  v_mul_f32 v{vL}, v{ML}, v{ML+1}")
    for w in range(1, 4): a(f"  v_fmac_f32 v{vL}, v{ML+2*w}, v{ML+2*w+1}")
    a("  s_waitcnt lgkmcnt(0)")
    for i in range(8): a(f"  v_mul_f32 v{O+i}, v{ML}, v{R+i}")
    for w in range(1, 4):
        for i in range(8): a(f"  v_fmac_f32 v{O+i}, v{ML+2*w}, v{R+8*w+i}")
    W = f"s[{sWS}:{sWS+3}]"
    a(f"  buffer_store_dwordx4 {r4(O)}, v{T+6}, {W}, s38 offen sc0 sc1\n  buffer_store_dwordx4 {r4(O+4)}, v{T+6}, {W}, s38 offen offset:1024 sc0 sc1")
    a(f"  buffer_store_dwordx2 {r2(vM)}, v{T+7}, {W}, s38 offen offset:2048 sc0 sc1")
    a(f"  s_and_b32 s37, s{sPair}, 1\n  s_lshl_b32 s37, s37, 4\n  s_lshl_b32 s32, 1, s37\n  v_mov_b32 v{T}, s32")
    a(f"  s_lshr_b32 s32, s{sPair}, 1\n  s_lshl_b32 s32, s32, 2")
    a("  s_waitcnt vmcnt(0)\n  s_mov_b64 exec, 1")
    a(f"  buffer_atomic_add v{T}, off, s[{sDbg}:{sDbg+3}], s32 sc0 sc1\n  s_waitcnt vmcnt(0)")
    a(f"  v_readfirstlane_b32 s32, v{T}\n  s_mov_b64 exec, -1\n  s_lshr_b32 s32, s32, s37\n  s_and_b32 s32, s32, 0xffff")
    a("  s_cmp_eq_u32 s32, 0\n  s_cbranch_scc1 L_fin")
    a(f"  buffer_load_dwordx2 {r2(ML)}, v{T+7}, {W}, s39 offen offset:2048 sc0 sc1")
    a(f"  buffer_load_dwordx4 {r4(R)}, v{T+6}, {W}, s39 offen sc0 sc1\n  buffer_load_dwordx4 {r4(R+4)}, v{T+6}, {W}, s39 offen offset:1024 sc0 sc1")
    a(f"  s_lshl_b32 s39, s{sPair}, 10\n  s_waitcnt vmcnt(2)")
    a(f"  v_max_f32 v{T}, v{vM}, v{ML}\n  v_sub_f32 v{T+1}, v{vM}, v{T}\n  v_sub_f32 v{T+2}, v{ML}, v{T}")
    a(f"  v_exp_f32 v{T+1}, v{T+1}\n  v_exp_f32 v{T+2}, v{T+2}\n  s_nop 0")
    a(f"  v_mul_f32 v{T+3}, v{T+1}, v{vL}\n  v_fmac_f32 v{T+3}, v{T+2}, v{ML+1}\n  v_rcp_f32 v{T+3}, v{T+3}\n  s_nop 0")
    a(f"  v_mul_f32 v{T+1}, v{T+1}, v{T+3}\n  v_mul_f32 v{T+2}, v{T+2}, v{T+3}")
    for i in range(8): a(f"  v_mul_f32 v{O+i}, v{O+i}, v{T+1}")
    a("  s_waitcnt vmcnt(0)")
    for i in range(8): a(f"  v_fmac_f32 v{O+i}, v{R+i}, v{T+2}")
    for i in range(4): a(f"  v_cvt_pk_bf16_f32 v{O+8+i}, v{O+2*i}, v{O+2*i+1}")
    a(f"  buffer_store_dwordx4 {r4(O+8)}, v{T+6}, s[{sOut}:{sOut+3}], s39 offen")
    a("L_fin:")
    if stamps:
        a("  s_waitcnt vmcnt(0)\n  s_memrealtime s[80:81]\n  s_getreg_b32 s82, hwreg(HW_REG_XCC_ID)\n  s_waitcnt lgkmcnt(0)")
        a(f"  s_lshl_b32 s32, s2, 4\n  s_add_u32 s32, s32, 0x100000\n  v_mov_b32 v{O}, s70\n  v_mov_b32 v{O+1}, s80\n  v_mov_b32 v{O+2}, s82\n  v_mov_b32 v{O+3}, 0")
        a(f"  s_mov_b64 exec, 1\n  buffer_store_dwordx4 {r4(O)}, off, {W}, s32")
    a("L_end:\n  s_endpgm")
    nvv = nvgpr or nv
    a('.section .rodata,"a"\n.p2align 6')
    a(f".amdhsa_kernel {name}\n  .amdhsa_next_free_vgpr {nvv}\n  .amdhsa_next_free_sgpr 96\n  .amdhsa_accum_offset {min(256,(nv+3)//4*4)}\n  .amdhsa_group_segment_fixed_size 0\n  .amdhsa_kernarg_size 80\n  .amdhsa_user_sgpr_count 2\n  .amdhsa_user_sgpr_kernarg_segment_ptr 1\n  .amdhsa_system_sgpr_workgroup_id_x 1\n.end_amdhsa_kernel")
    return "\n".join(L) + "\n"
if __name__ == "__main__":
    kw = json.loads(sys.argv[2]) if len(sys.argv) > 2 else {}
    open(sys.argv[1], "w").write(gen(**kw))
```

```python
import struct, sys, json
KNAME = "standalone__kv_cache_quant_int4_int2_kv_with_per_channel_or_per_token_scales__sampling_kernel"
HEADER = open("standalone__kv_cache_quant_int4_int2_kv_with_per_channel_or_per_token_scales__sampling.s.ref").read().split("; Override launch")[0]
def f32(x): return "0x%08x" % struct.unpack("<I", struct.pack("<f", x))[0]
QSCALE = f32((128.0 ** -0.5) * 1.4426950408889634)
LDS_QP, LDS_C, LDS_VS, LDS_VZ, LDS_O, LDS_ML = 0, 0x4000, 0x4400, 0x5400, 0x6400, 0x8400

def gen(name=KNAME, D=2, lds=90112, flags="nt", pairmode=0, stamps=False, nvgpr=None, sflags='nt', early=0, pat=1, tail=1, oflags='', pfearly=0):
    NW = 4; NSTEP = 32
    L = []; a = L.append
    a(HEADER.rstrip())
    a(f"; @launch grid=(256,1,1) block=(256,1,1) lds={lds}")
    a('.amdgcn_target "amdgcn-amd-amdhsa--gfx950"\n.text')
    a(f".globl {name}\n.p2align 8\n.type {name},@function\n{name}:")
    vKoff, vVoff, vQP, vC, vVS = 1, 2, 3, 4, 5
    vM, vL, vCc, vBias = 6, 7, 8, 9
    S = 10; P = 14; VSr = 16; VZr = 18; T = 20
    QP = 28; PK = 44; O = 60; Z = 92; RAW = 96
    def Kr(b): return RAW + 64*b
    def Vr(b): return RAW + 64*b + 32
    nv = RAW + 64*D
    assert nv <= 256
    def r4(x): return f"v[{x}:{x+3}]"
    def r2(x): return f"v[{x}:{x+1}]"
    sK, sV, sG, sWS, sOut, sDbg = 40, 44, 48, 52, 56, 60
    sPair, sHalf, sSo, sW = 33, 34, 36, 3
    def srd(d, lo, n):
        a(f"  s_mov_b32 s{d}, s{lo}\n  s_and_b32 s{d+1}, s{lo+1}, 0xffff\n  s_mov_b32 s{d+2}, {n}\n  s_mov_b32 s{d+3}, 0x20000")
    a("  s_cmp_ge_u32 s2, 256\n  s_cbranch_scc1 L_end")
    if stamps: a("  s_memrealtime s[70:71]")
    a("  s_load_dwordx16 s[4:19], s[0:1], 0\n  s_load_dwordx4 s[20:23], s[0:1], 64")
    a("  v_lshrrev_b32 v1, 6, v0\n  v_and_b32 v0, 63, v0")
    if pairmode == 0: a(f"  s_lshr_b32 s{sPair}, s2, 1\n  s_and_b32 s{sHalf}, s2, 1")
    else:             a(f"  s_and_b32 s{sPair}, s2, 127\n  s_lshr_b32 s{sHalf}, s2, 7")
    a(f"  v_readfirstlane_b32 s{sW}, v1")
    a(f"  v_and_b32 v{T}, 15, v0\n  v_lshrrev_b32 v{T+1}, 4, v0")
    lg0, lg1, lw0, lw1, lr0 = {0: (2,3,4,5,6), 1: (2,6,3,4,5), 2: (4,6,2,3,5), 3: (3,4,2,6,5), 4: (3,6,2,4,5)}[pat]
    a(f"  v_and_b32 v{T+2}, 3, v0\n  v_lshlrev_b32 v{vKoff}, 9, v{T+2}\n  v_bfe_u32 v{T+2}, v0, 2, 1\n  v_lshl_add_u32 v{vKoff}, v{T+2}, {9+lg0}, v{vKoff}")
    a(f"  v_bfe_u32 v{T+2}, v0, 3, 1\n  v_lshl_add_u32 v{vKoff}, v{T+2}, {9+lg1}, v{vKoff}\n  v_lshl_add_u32 v{vKoff}, v{T+1}, 4, v{vKoff}")
    a(f"  v_bfe_u32 v{T+2}, v0, 4, 1\n  v_lshlrev_b32 v{vVS}, {lg0}, v{T+2}\n  v_bfe_u32 v{T+2}, v0, 5, 1\n  v_lshl_add_u32 v{vVS}, v{T+2}, {lg1}, v{vVS}")
    a(f"  v_lshlrev_b32 v{vVoff}, 4, v{T}\n  v_lshl_add_u32 v{vVoff}, v{vVS}, 9, v{vVoff}")
    a(f"  s_and_b32 s86, s{sW}, 1\n  s_lshl_b32 s86, s86, {lw0}\n  s_lshr_b32 s37, s{sW}, 1\n  s_lshl_b32 s37, s37, {lw1}\n  s_add_u32 s86, s86, s37")
    a(f"  s_lshl_b32 s35, s{sPair}, 1\n  s_add_u32 s35, s35, s{sHalf}")
    a(f"  s_lshl_b32 s{sSo}, s35, 20\n  s_lshl_b32 s37, s86, 9\n  s_add_u32 s{sSo}, s{sSo}, s37")
    a(f"  v_lshrrev_b32 v{T+2}, 2, v{T}\n  v_and_b32 v{T+3}, 3, v{T}")
    a(f"  v_lshlrev_b32 v{T+4}, 6, v{T+2}\n  v_lshl_add_u32 v{T+4}, v{T+3}, 3, v{T+4}")
    a(f"  v_lshl_add_u32 v{T+5}, v{T+1}, 8, v{T+4}")
    a(f"  v_lshlrev_b32 v{T+6}, 4, v0")
    a(f"  s_lshl_b32 s38, s35, 12\n  s_lshl_b32 s37, s{sW}, 10\n  s_add_u32 s38, s38, s37")
    a(f"  s_lshl_b32 s39, s{sPair}, 10")
    a("  s_waitcnt lgkmcnt(0)")
    KS, KZ, Q = QP, QP+4, PK
    def small():
        srd(24, 10, 1 << 20); srd(28, 12, 1 << 20)
        srd(sG, 4, 1 << 17)
        a(f"  buffer_load_dwordx2 {r2(KS)}, v{T+5}, s[24:27], s38 offen {sflags}\n  buffer_load_dwordx2 {r2(KS+2)}, v{T+5}, s[24:27], s38 offen offset:32 {sflags}")
        a(f"  buffer_load_dwordx2 {r2(KZ)}, v{T+5}, s[28:31], s38 offen {sflags}\n  buffer_load_dwordx2 {r2(KZ+2)}, v{T+5}, s[28:31], s38 offen offset:32 {sflags}")
        for h in range(4):
            a(f"  buffer_load_dwordx2 {r2(Q+4*h)}, v{T+4}, s[{sG}:{sG+3}], s39 offen offset:{h*256} {sflags}")
            a(f"  buffer_load_dwordx2 {r2(Q+4*h+2)}, v{T+4}, s[{sG}:{sG+3}], s39 offen offset:{h*256+32} {sflags}")
        srd(64, 14, 1 << 20); srd(72, 16, 1 << 20)
        a(f"  s_add_u32 m0, s37, {LDS_VS}\n  s_nop 0\n  buffer_load_dwordx4 v{T+6}, s[64:67], s38 offen {sflags} lds")
        a(f"  s_add_u32 m0, s37, {LDS_VZ}\n  s_nop 0\n  buffer_load_dwordx4 v{T+6}, s[72:75], s38 offen {sflags} lds")
    srd(sK, 6, 1 << 28); srd(sV, 8, 1 << 28)
    def issueK(b):
        for n in range(8):
            a(f"  buffer_load_dwordx4 {r4(Kr(b)+4*n)}, v{vKoff}, s[{sK}:{sK+3}], s{sSo} offen offset:{64*n} {flags}")
    nissued = [0]
    def issueV(b):
        for n in range(8):
            a(f"  buffer_load_dwordx4 {r4(Vr(b)+4*n)}, v{vVoff}, s[{sV}:{sV+3}], s{sSo} offen offset:{(n>>1)*512+(n&1)*256} {flags}")
        a(f"  s_add_u32 s{sSo}, s{sSo}, {(512 << lr0) if nissued[0] % 2 == 0 else 65536 - (512 << lr0)}")
        nissued[0] += 1
    for b in range(D):
        if b == early: small()
        issueK(b); issueV(b)
    if early >= D: small()
    srd(sWS, 22, 1 << 21); srd(sOut, 18, 1 << 17); srd(sDbg, 20, 256)
    W = f"s[{sWS}:{sWS+3}]"
    a(f"  s_lshl_b32 s87, s35, 12\n  s_xor_b32 s88, s87, 4096")
    a(f"  s_and_b32 s89, s{sPair}, 1\n  s_lshl_b32 s89, s89, 4\n  s_lshl_b32 s90, 1, s89\n  s_lshr_b32 s91, s{sPair}, 1\n  s_lshl_b32 s91, s91, 2")
    if tail == 1:
        a(f"  s_cmp_lg_u32 s{sW}, 0\n  s_cbranch_scc1 L_noclear")
        for i in range(4): a(f"  v_mov_b32 v{Z+i}, -1")
        a(f"  v_lshlrev_b32 v{T+7}, 3, v0")
        a(f"  buffer_store_dwordx4 {r4(Z)}, v{T+6}, {W}, s87 offen sc0 sc1\n  buffer_store_dwordx4 {r4(Z)}, v{T+6}, {W}, s87 offen offset:1024 sc0 sc1")
        a(f"  buffer_store_dwordx2 {r2(Z)}, v{T+7}, {W}, s87 offen offset:2048 sc0 sc1\nL_noclear:")
    a(f"  v_and_b32 v{vC}, 3, v0\n  v_lshlrev_b32 v{vQP}, 6, v{vC}\n  v_lshl_add_u32 v{vQP}, v{T+1}, 4, v{vQP}")
    a(f"  v_lshlrev_b32 v{vC}, 2, v{vC}\n  v_add_u32 v{vC}, {LDS_C}, v{vC}")
    a(f"  s_lshl_b32 s37, s86, 1\n  s_add_u32 s37, s37, {LDS_VS}\n  v_lshl_add_u32 v{vVS}, v{vVS}, 1, s37")
    a(f"  s_lshl_b32 s37, s{sW}, 2\n  v_add_u32 v{T+7}, s37, v{T+1}")
    a(f"  v_lshlrev_b32 v{T+4}, 10, v{T+7}\n  v_lshl_add_u32 v{T+4}, v{T+2}, 8, v{T+4}\n  v_lshl_add_u32 v{T+4}, v{T+3}, 4, v{T+4}")
    a(f"  v_lshlrev_b32 v{T+5}, 4, v{T+7}\n  v_add_u32 v{T+5}, {LDS_C}, v{T+5}")
    a(f"  s_mov_b32 s37, {QSCALE}\n  s_mov_b32 s76, 0xffff0000")
    a(f"  s_waitcnt vmcnt({16*max(0, D-early)})")
    A_, B_, C_ = O, O+8, O+16
    def unpack(dst, src, n):
        for i in range(n):
            a(f"  v_lshlrev_b32 v{dst+2*i}, 16, v{src+i}\n  v_and_b32 v{dst+2*i+1}, s76, v{src+i}")
    unpack(A_, KS, 4); unpack(B_, KZ, 4)
    for i in range(8): a(f"  v_mul_f32 v{A_+i}, s37, v{A_+i}")
    CH = S
    for h in range(4):
        unpack(C_, Q+4*h, 4)
        for i in range(8): a(f"  v_mul_f32 v{C_+i}, v{C_+i}, v{A_+i}")
        for i in range(4): a(f"  v_cvt_pk_bf16_f32 v{Q+4*h+i}, v{C_+2*i}, v{C_+2*i+1}")
        a(f"  ds_write_b128 v{T+4}, {r4(Q+4*h)} offset:{LDS_QP+h*64}")
        unpack(C_, Q+4*h, 4)
        a(f"  v_mul_f32 v{CH+h}, v{C_}, v{B_}")
        for i in range(1, 8): a(f"  v_fmac_f32 v{CH+h}, v{C_+i}, v{B_+i}")
    for rr in (8, 4, 2, 1):
        a("  s_nop 1")
        for h in range(4): a(f"  v_add_f32_dpp v{CH+h}, v{CH+h}, v{CH+h} row_ror:{rr} row_mask:0xf bank_mask:0xf")
    a(f"  ds_write_b128 v{T+5}, {r4(CH)}")
    for i in range(36): a(f"  v_mov_b32 v{O+i}, 0")
    a(f"  v_mov_b32 v{vM}, 0xff7fffff\n  v_mov_b32 v{vL}, 0")
    a("  s_waitcnt lgkmcnt(0)\n  s_barrier")
    def readQP():
        for m in range(4): a(f"  ds_read_b128 {r4(QP+4*m)}, v{vQP} offset:{LDS_QP+m*256}")
        a(f"  ds_read_b32 v{vCc}, v{vC}")
        a(f"  v_add_u32 v{vQP}, 1024, v{vQP}\n  v_add_u32 v{vC}, 16, v{vC}")
    readQP()
    lab = [0]
    PB = Kr((NSTEP-1) % D)
    def partner_loads():
        a(f"  buffer_load_dwordx4 {r4(PB)}, v{T+6}, {W}, s88 offen sc0 sc1\n  buffer_load_dwordx4 {r4(PB+4)}, v{T+6}, {W}, s88 offen offset:1024 sc0 sc1")
        a(f"  buffer_load_dwordx2 {r2(PB+8)}, v{T+7}, {W}, s88 offen offset:2048 sc0 sc1")
    def step(b, par, issue, wK, wV, nextgroup, last=False, ticket=False):
        a(f"  ds_read_b64 {r2(VSr)}, v{vVS} offset:{par*(2 << lr0)}\n  ds_read_b64 {r2(VZr)}, v{vVS} offset:{par*(2 << lr0)+LDS_VZ-LDS_VS}")
        a(f"  s_waitcnt vmcnt({wK})")
        k = Kr(b)
        for n in range(8):
            for e in range(4): a(f"  v_cvt_f32_i32 v{k+4*n+e}, v{k+4*n+e}")
            a(f"  v_cvt_pk_bf16_f32 v{PK+2*n}, v{k+4*n}, v{k+4*n+1}\n  v_cvt_pk_bf16_f32 v{PK+2*n+1}, v{k+4*n+2}, v{k+4*n+3}")
        if issue: issueK(b)
        else: a("  s_nop 1")
        a("  s_waitcnt lgkmcnt(0)")
        if ticket and tail == 1:
            a(f"  s_cmp_lg_u32 s{sW}, 0\n  s_cbranch_scc1 L_noticket\n  s_atomic_add s90, s[20:21], s91 glc\nL_noticket:")
        for m in range(4):
            a(f"  v_mfma_f32_16x16x32_bf16 {r4(S)}, {r4(PK+4*m)}, {r4(QP+4*m)}, {'0' if m == 0 else r4(S)}")
        unpack(T, VSr, 2)
        a("  s_nop 4")
        a(f"  v_max3_f32 v{T+4}, v{S}, v{S+1}, v{S+2}\n  v_max_f32 v{T+4}, v{T+4}, v{S+3}\n  v_sub_f32 v{T+4}, v{T+4}, v{vCc}")
        lab[0] += 1; lb = f"L_nr{lab[0]}"
        a(f"  v_cmp_gt_f32 vcc, v{T+4}, v{vM}\n  s_cbranch_vccz {lb}")
        a(f"  v_mov_b32 v{T+5}, v{T+4}\n  s_nop 1\n  v_permlane16_swap_b32 v{T+4}, v{T+5}\n  v_max_f32 v{T+4}, v{T+4}, v{T+5}")
        a(f"  v_mov_b32 v{T+5}, v{T+4}\n  s_nop 1\n  v_permlane32_swap_b32 v{T+4}, v{T+5}\n  v_max3_f32 v{T+4}, v{T+4}, v{T+5}, v{vM}")
        a(f"  v_sub_f32 v{T+5}, v{vM}, v{T+4}\n  v_exp_f32 v{T+5}, v{T+5}\n  v_mov_b32 v{vM}, v{T+4}\n  v_mul_f32 v{vL}, v{vL}, v{T+5}")
        for i in range(36): a(f"  v_mul_f32 v{O+i}, v{O+i}, v{T+5}")
        a(f"{lb}:")
        a(f"  v_add_f32 v{vBias}, v{vCc}, v{vM}")
        for i in range(4): a(f"  v_sub_f32 v{S+i}, v{S+i}, v{vBias}")
        if nextgroup: readQP()
        for i in range(4): a(f"  v_exp_f32 v{S+i}, v{S+i}")
        a(f"  v_add_f32 v{T+4}, v{S}, v{S+1}")
        for i in range(3): a(f"  v_mul_f32 v{T+i}, v{T+i}, v{S+i}")
        a(f"  v_add_f32 v{T+5}, v{S+2}, v{S+3}\n  v_mul_f32 v{T+3}, v{T+3}, v{S+3}")
        a(f"  v_add_f32 v{T+4}, v{T+4}, v{T+5}\n  v_cvt_pk_bf16_f32 v{P}, v{T}, v{T+1}\n  v_cvt_pk_bf16_f32 v{P+1}, v{T+2}, v{T+3}\n  v_add_f32 v{vL}, v{vL}, v{T+4}")
        if last and tail == 1:
            a(f"  s_lshr_b32 s90, s90, s89\n  s_and_b32 s90, s90, 0xffff\n  s_cmp_lg_u32 s{sW}, 0\n  s_cselect_b32 s90, 0, s90")
            a(f"  v_lshlrev_b32 v{T+6}, 4, v0\n  v_lshlrev_b32 v{T+7}, 3, v0")
            a(f"  s_cmp_eq_u32 s90, 0\n  s_cbranch_scc1 L_nopf")
            if not pfearly: a(f"  s_waitcnt vmcnt(0)")
            partner_loads()
            if pfearly: a(f"  s_waitcnt vmcnt(3)")
            a(f"  s_branch L_pfdone\nL_nopf:\n  s_waitcnt vmcnt(0)\nL_pfdone:")
        else:
            a(f"  s_waitcnt vmcnt({wV})")
        v = Vr(b)
        for hf in range(2):
            for s in range(4):
                for e in range(4): a(f"  v_cvt_f32_i32 v{v+4*(2*s+hf)+e}, v{v+4*(2*s+hf)+e}")
            for e in range(4):
                for sp in range(2):
                    a(f"  v_cvt_pk_bf16_f32 v{PK+2*(4*hf+e)+sp}, v{v+4*(4*sp+hf)+e}, v{v+4*(4*sp+2+hf)+e}")
        if issue: issueV(b)
        else: a("  s_nop 1")
        a(f"  v_mfma_f32_16x16x16_bf16 {r4(Z)}, {r2(VZr)}, {r2(P)}, {r4(Z)}")
        for x in range(8):
            a(f"  v_mfma_f32_16x16x16_bf16 {r4(O+4*x)}, {r2(PK+2*x)}, {r2(P)}, {r4(O+4*x)}")
        if par == 1: a(f"  v_add_u32 v{vVS}, 256, v{vVS}")
    U = 2 if D in (1, 2) else 2*D
    nmain = (NSTEP - D)//U*U
    full = 8*(2*D-1)
    a(f"  s_mov_b32 s77, {nmain//U}\nL_loop:")
    for t in range(U): step(t % D, t & 1, True, full, full, t & 1)
    a("  s_sub_u32 s77, s77, 1\n  s_cmp_lg_u32 s77, 0\n  s_cbranch_scc1 L_loop")
    for t in range(nmain, NSTEP):
        issue = t + D < NSTEP
        if issue: wK = wV = full
        else:
            rem = NSTEP - t
            wK = 8*(2*rem-1); wV = 8*(2*rem-2)
        step(t % D, t & 1, issue, wK, wV, (t & 1) and t+1 < NSTEP, last=(t == NSTEP-1), ticket=(t == NSTEP-2))
    if stamps: a("  s_memrealtime s[84:85]")
    a(f"  v_mov_b32 v{T}, v{vL}\n  s_nop 1\n  v_permlane16_swap_b32 v{vL}, v{T}\n  v_add_f32 v{vL}, v{vL}, v{T}")
    a(f"  v_mov_b32 v{T}, v{vL}\n  s_nop 1\n  v_permlane32_swap_b32 v{vL}, v{T}\n  v_add_f32 v{vL}, v{vL}, v{T}")
    a(f"  v_and_b32 v{T}, 15, v0\n  v_lshrrev_b32 v{T+1}, 4, v0\n  s_lshl_b32 s37, s{sW}, 11\n  s_add_u32 s37, s37, {LDS_O}")
    a(f"  v_lshlrev_b32 v{T+2}, 9, v{T}\n  v_lshl_add_u32 v{T+2}, v{T+1}, 6, v{T+2}\n  v_add_u32 v{T+2}, s37, v{T+2}")
    a(f"  s_lshl_b32 s37, s{sW}, 5\n  s_add_u32 s37, s37, {LDS_ML}\n  v_lshlrev_b32 v{T+3}, 3, v{T}\n  v_add_u32 v{T+3}, s37, v{T+3}")
    a(f"  v_cmp_gt_u32 vcc, 4, v{T}")
    R = Vr((NSTEP-1) % D)
    for hf in range(2):
        for r in range(4):
            for e in range(4): a(f"  v_sub_f32 v{R+16*hf+4*r+e}, v{O+16*hf+4*e+r}, v{Z}")
    a("  s_and_saveexec_b64 s[78:79], vcc")
    for hf in range(2):
        for r in range(4): a(f"  ds_write_b128 v{T+2}, {r4(R+16*hf+4*r)} offset:{hf*256+r*16}")
    a(f"  ds_write_b64 v{T+3}, {r2(vM)}")
    a("  s_mov_b64 exec, s[78:79]\n  s_waitcnt lgkmcnt(0)\n  s_barrier")
    a(f"  s_cmp_lg_u32 s{sW}, 0\n  s_cbranch_scc1 L_end")
    a(f"  v_lshlrev_b32 v{T+2}, 5, v0\n  v_lshlrev_b32 v{T+3}, 3, v{T+1}")
    ML = QP
    for w in range(4): a(f"  ds_read_b64 {r2(ML+2*w)}, v{T+3} offset:{LDS_ML+w*32}")
    for w in range(4): a(f"  ds_read_b128 {r4(R+8*w)}, v{T+2} offset:{LDS_O+w*2048}\n  ds_read_b128 {r4(R+8*w+4)}, v{T+2} offset:{LDS_O+w*2048+16}")
    a(f"  v_lshlrev_b32 v{T+6}, 4, v0\n  v_lshlrev_b32 v{T+7}, 3, v0")
    a("  s_waitcnt lgkmcnt(8)")
    a(f"  v_max3_f32 v{vM}, v{ML}, v{ML+2}, v{ML+4}\n  v_max_f32 v{vM}, v{vM}, v{ML+6}")
    for w in range(4): a(f"  v_sub_f32 v{ML+2*w}, v{ML+2*w}, v{vM}")
    for w in range(4): a(f"  v_exp_f32 v{ML+2*w}, v{ML+2*w}")
    a(f"  s_nop 0\n  v_mul_f32 v{vL}, v{ML}, v{ML+1}")
    for w in range(1, 4): a(f"  v_fmac_f32 v{vL}, v{ML+2*w}, v{ML+2*w+1}")
    a("  s_waitcnt lgkmcnt(0)")
    for i in range(8): a(f"  v_mul_f32 v{O+i}, v{ML}, v{R+i}")
    for w in range(1, 4):
        for i in range(8): a(f"  v_fmac_f32 v{O+i}, v{ML+2*w}, v{R+8*w+i}")
    def store_partial():
        a(f"  buffer_store_dwordx4 {r4(O)}, v{T+6}, {W}, s87 offen sc0 sc1\n  buffer_store_dwordx4 {r4(O+4)}, v{T+6}, {W}, s87 offen offset:1024 sc0 sc1")
        a(f"  buffer_store_dwordx2 {r2(vM)}, v{T+7}, {W}, s87 offen offset:2048 sc0 sc1")
    if tail == 0:
        store_partial()
        a(f"  v_mov_b32 v{T}, s90")
        a("  s_waitcnt vmcnt(0)\n  s_mov_b64 exec, 1")
        a(f"  buffer_atomic_add v{T}, off, s[{sDbg}:{sDbg+3}], s91 sc0 sc1\n  s_waitcnt vmcnt(0)")
        a(f"  v_readfirstlane_b32 s32, v{T}\n  s_mov_b64 exec, -1\n  s_lshr_b32 s32, s32, s89\n  s_and_b32 s32, s32, 0xffff")
        a("  s_cmp_eq_u32 s32, 0\n  s_cbranch_scc1 L_fin")
        partner_loads()
        a("  s_waitcnt vmcnt(0)")
    else:
        a("  s_cmp_lg_u32 s90, 0\n  s_cbranch_scc1 L_second")
        store_partial()
        a("  s_branch L_fin")
        a("L_repoll:")
        partner_loads()
        a("L_second:\n  s_waitcnt vmcnt(0)")
        a(f"  v_max3_u32 v{T}, v{PB}, v{PB+1}, v{PB+2}")
        for i in (3, 5, 7): a(f"  v_max3_u32 v{T}, v{T}, v{PB+i}, v{PB+i+1}")
        a(f"  v_max_u32 v{T}, v{T}, v{PB+9}\n  v_cmp_eq_u32 vcc, -1, v{T}\n  s_cbranch_vccnz L_repoll")
    a(f"  s_lshl_b32 s39, s{sPair}, 10")
    a(f"  v_max_f32 v{T}, v{vM}, v{PB+8}\n  v_sub_f32 v{T+1}, v{vM}, v{T}\n  v_sub_f32 v{T+2}, v{PB+8}, v{T}")
    a(f"  v_exp_f32 v{T+1}, v{T+1}\n  v_exp_f32 v{T+2}, v{T+2}\n  s_nop 0")
    a(f"  v_mul_f32 v{T+3}, v{T+1}, v{vL}\n  v_fmac_f32 v{T+3}, v{T+2}, v{PB+9}\n  v_rcp_f32 v{T+3}, v{T+3}\n  s_nop 0")
    a(f"  v_mul_f32 v{T+1}, v{T+1}, v{T+3}\n  v_mul_f32 v{T+2}, v{T+2}, v{T+3}")
    for i in range(8): a(f"  v_mul_f32 v{O+i}, v{O+i}, v{T+1}")
    for i in range(8): a(f"  v_fmac_f32 v{O+i}, v{PB+i}, v{T+2}")
    for i in range(4): a(f"  v_cvt_pk_bf16_f32 v{O+8+i}, v{O+2*i}, v{O+2*i+1}")
    a(f"  buffer_store_dwordx4 {r4(O+8)}, v{T+6}, s[{sOut}:{sOut+3}], s39 offen {oflags}")
    a("L_fin:")
    if stamps:
        a("  s_waitcnt vmcnt(0)\n  s_memrealtime s[80:81]\n  s_getreg_b32 s82, hwreg(HW_REG_XCC_ID)\n  s_waitcnt lgkmcnt(0)")
        a(f"  s_lshl_b32 s32, s2, 4\n  s_add_u32 s32, s32, 0x100000\n  v_mov_b32 v{O}, s70\n  v_mov_b32 v{O+1}, s80\n  v_mov_b32 v{O+2}, s82\n  v_mov_b32 v{O+3}, s84")
        a(f"  s_mov_b64 exec, 1\n  buffer_store_dwordx4 {r4(O)}, off, {W}, s32")
    a("L_end:\n  s_endpgm")
    nvv = nvgpr or nv
    a('.section .rodata,"a"\n.p2align 6')
    a(f".amdhsa_kernel {name}\n  .amdhsa_next_free_vgpr {nvv}\n  .amdhsa_next_free_sgpr 96\n  .amdhsa_accum_offset {min(256,(nv+3)//4*4)}\n  .amdhsa_group_segment_fixed_size 0\n  .amdhsa_kernarg_size 80\n  .amdhsa_user_sgpr_count 2\n  .amdhsa_user_sgpr_kernarg_segment_ptr 1\n  .amdhsa_system_sgpr_workgroup_id_x 1\n.end_amdhsa_kernel")
    return "\n".join(L) + "\n"
if __name__ == "__main__":
    kw = json.loads(sys.argv[2]) if len(sys.argv) > 2 else {}
    open(sys.argv[1], "w").write(gen(**kw))
```

```python
import struct, sys, json
KNAME = "standalone__kv_cache_quant_int4_int2_kv_with_per_channel_or_per_token_scales__sampling_kernel"
HEADER = open("standalone__kv_cache_quant_int4_int2_kv_with_per_channel_or_per_token_scales__sampling.s.ref").read().split("; Override launch")[0]
def f32(x): return "0x%08x" % struct.unpack("<I", struct.pack("<f", x))[0]
QSCALE = f32((128.0 ** -0.5) * 1.4426950408889634)
LDS_QP, LDS_C, LDS_VS, LDS_VZ, LDS_O, LDS_ML, LDS_X = 0, 0x4000, 0x4400, 0x5400, 0x6400, 0x8400, 0x8800

def gen(name=KNAME, D=4, lds=90112, flags="nt", stamps=False, sflags='nt', km=2, pre=2, tk=29, oflags='', vx=2, late=0, kord=0):
    NSTEP = 32
    L = []; a = L.append
    a(HEADER.rstrip())
    a(f"; @launch grid=(256,1,1) block=(256,1,1) lds={lds}")
    a('.amdgcn_target "amdgcn-amd-amdhsa--gfx950"\n.text')
    a(f".globl {name}\n.p2align 8\n.type {name},@function\n{name}:")
    vKoff, vVoff, vQP, vC, vVS = 1, 2, 3, 4, 5
    vM, vL, vCc, vKh = 6, 7, 8, 9
    S = 10; P = 14; VZr = 16; vVZ = 18; vX = 19; T = 20
    QP = 28; PK = 44; O = 60; Z = 92; RAW = 96
    def R_(b): return RAW + 32*b
    nv = RAW + 32*D
    NV = 16 if vx == 2 else 8
    def r4(x): return f"v[{x}:{x+3}]"
    def r2(x): return f"v[{x}:{x+1}]"
    sK, sV, sG, sWS, sOut = 40, 44, 48, 52, 56
    sPair, sHalf, sSo, sSv, sW = 33, 34, 36, 32, 3
    mEven, mOdd, mB2, mB3 = "s[92:93]", "s[94:95]", "s[68:69]", "s[60:61]"
    def srd(d, lo, n):
        a(f"  s_mov_b32 s{d}, s{lo}\n  s_and_b32 s{d+1}, s{lo+1}, 0xffff\n  s_mov_b32 s{d+2}, {n}\n  s_mov_b32 s{d+3}, 0x20000")
    a("  s_cmp_ge_u32 s2, 256\n  s_cbranch_scc1 L_end")
    if stamps: a("  s_memrealtime s[70:71]")
    a("  s_load_dwordx16 s[4:19], s[0:1], 0\n  s_load_dwordx4 s[20:23], s[0:1], 64")
    a("  v_lshrrev_b32 v1, 6, v0\n  v_and_b32 v0, 63, v0")
    a(f"  s_lshr_b32 s{sPair}, s2, 1")
    a(f"  v_readfirstlane_b32 s{sW}, v1")
    a(f"  v_and_b32 v{T}, 15, v0\n  v_lshrrev_b32 v{T+1}, 4, v0")
    a(f"  v_lshlrev_b32 v{vKoff}, 9, v{T}\n  v_lshl_add_u32 v{vKoff}, v{T+1}, 4, v{vKoff}")
    a(f"  v_and_b32 v{T+2}, 14, v0\n  v_lshlrev_b32 v{vKh}, 9, v{T+2}\n  v_lshl_add_u32 v{vKh}, v{T+1}, 5, v{vKh}\n  v_and_b32 v{T+2}, 1, v0\n  v_lshl_add_u32 v{vKh}, v{T+2}, 4, v{vKh}")
    a(f"  v_lshlrev_b32 v{vVoff}, {3 if vx == 2 else 4}, v{T}\n  v_lshl_add_u32 v{vVoff}, v{T+1}, 11, v{vVoff}")
    a(f"  s_lshl_b32 s{sSo}, s2, 20\n  s_lshl_b32 s37, s{sW}, 13\n  s_add_u32 s{sSo}, s{sSo}, s37\n  s_mov_b32 s{sSv}, s{sSo}")
    a(f"  v_lshrrev_b32 v{T+2}, 2, v{T}\n  v_and_b32 v{T+3}, 3, v{T}")
    a(f"  v_cmp_gt_u32 vcc, {km}, v{T+2}\n  v_lshlrev_b32 v{T+4}, 4, v{T+3}\n  v_lshlrev_b32 v{T+5}, 3, v{T+3}\n  v_cndmask_b32 v{T+4}, v{T+4}, v{T+5}, vcc")
    a(f"  v_lshl_add_u32 v{T+4}, v{T+2}, 6, v{T+4}")
    a(f"  v_cndmask_b32 v{P}, 8, 32, vcc\n  v_add_u32 v{P}, v{P}, v{T+4}")
    a(f"  v_lshl_add_u32 v{T+5}, v{T+1}, 8, v{T+4}\n  v_lshl_add_u32 v{P+1}, v{T+1}, 8, v{P}")
    a(f"  v_lshlrev_b32 v{T+6}, 4, v0")
    a(f"  s_lshl_b32 s38, s2, 12\n  s_lshl_b32 s37, s{sW}, 10\n  s_add_u32 s38, s38, s37")
    a(f"  s_lshl_b32 s39, s{sPair}, 10")
    a("  s_waitcnt lgkmcnt(0)")
    KS, KZ, Q = QP, QP+4, PK
    def dma():
        srd(64, 14, 1 << 20); srd(72, 16, 1 << 20)
        a(f"  s_lshl_b32 s37, s{sW}, 10")
        a(f"  s_add_u32 m0, s37, {LDS_VS}\n  s_nop 0\n  buffer_load_dwordx4 v{T+6}, s[64:67], s38 offen {sflags} lds")
        a(f"  s_add_u32 m0, s37, {LDS_VZ}\n  s_nop 0\n  buffer_load_dwordx4 v{T+6}, s[72:75], s38 offen {sflags} lds")
    srd(24, 10, 1 << 20); srd(28, 12, 1 << 20); srd(sG, 4, 1 << 17)
    a(f"  buffer_load_dwordx2 {r2(KS)}, v{T+5}, s[24:27], s38 offen {sflags}\n  buffer_load_dwordx2 {r2(KS+2)}, v{P+1}, s[24:27], s38 offen {sflags}")
    a(f"  buffer_load_dwordx2 {r2(KZ)}, v{T+5}, s[28:31], s38 offen {sflags}\n  buffer_load_dwordx2 {r2(KZ+2)}, v{P+1}, s[28:31], s38 offen {sflags}")
    for h in range(4):
        a(f"  buffer_load_dwordx2 {r2(Q+4*h)}, v{T+4}, s[{sG}:{sG+3}], s39 offen offset:{h*256} {sflags}")
        a(f"  buffer_load_dwordx2 {r2(Q+4*h+2)}, v{P}, s[{sG}:{sG+3}], s39 offen offset:{h*256} {sflags}")
    if not late: dma()
    srd(sK, 6, 1 << 28); srd(sV, 8, 1 << 28)
    korder = list(range(8)) if kord == 0 else [n for c in range(4) for n in range(8) if 0]
    def issueK(b):
        for n in range(8):
            if n < 2*km: a(f"  buffer_load_dwordx4 {r4(R_(b)+4*n)}, v{vKoff}, s[{sK}:{sK+3}], s{sSo} offen offset:{64*n} {flags}")
            else: a(f"  buffer_load_dwordx4 {r4(R_(b)+4*n)}, v{vKh}, s[{sK}:{sK+3}], s{sSo} offen offset:{(n&1)*512+(n>>1)*128} {flags}")
        a(f"  s_add_u32 s{sSo}, s{sSo}, 32768")
    def issueV(b):
        if vx == 2:
            for n in range(16): a(f"  buffer_load_dwordx2 {r2(R_(b)+2*n)}, v{vVoff}, s[{sV}:{sV+3}], s{sSv} offen offset:{n*128} {flags}")
        else:
            for n in range(8): a(f"  buffer_load_dwordx4 {r4(R_(b)+4*n)}, v{vVoff}, s[{sV}:{sV+3}], s{sSv} offen offset:{n*256} {flags}")
        a(f"  s_add_u32 s{sSv}, s{sSv}, 32768")
    for b in range(pre): issueK(b)
    srd(sWS, 22, 1 << 21); srd(sOut, 18, 1 << 17)
    W = f"s[{sWS}:{sWS+3}]"
    a(f"  s_lshl_b32 s87, s2, 12\n  s_xor_b32 s88, s87, 4096")
    a(f"  s_and_b32 s89, s{sPair}, 1\n  s_lshl_b32 s89, s89, 4\n  s_lshl_b32 s90, 1, s89\n  s_lshr_b32 s91, s{sPair}, 1\n  s_lshl_b32 s91, s91, 2")
    for m, v in ((92, 0x55555555), (94, 0xaaaaaaaa), (68, 0xf0f0f0f0), (60, 0xff00ff00)): a(f"  s_mov_b32 s{m}, {hex(v)}\n  s_mov_b32 s{m+1}, s{m}")
    a(f"  v_and_b32 v{vC}, 3, v0\n  v_lshlrev_b32 v{vQP}, 6, v{vC}\n  v_lshl_add_u32 v{vQP}, v{T+1}, 4, v{vQP}")
    a(f"  v_lshlrev_b32 v{vC}, 2, v{vC}\n  v_add_u32 v{vC}, {LDS_C}, v{vC}")
    a(f"  s_lshl_b32 s37, s{sW}, 5\n  s_add_u32 s37, s37, {LDS_VS}\n  v_lshl_add_u32 v{vVZ}, v{T+1}, 3, s37\n  v_lshl_add_u32 v{vVS}, v{T+2}, 1, v{vVZ}")
    a(f"  s_lshl_b32 s37, s{sW}, 13\n  s_add_u32 s37, s37, {LDS_X}\n  v_lshl_add_u32 v{vX}, v0, 2, s37")
    a(f"  s_lshl_b32 s37, s{sW}, 2\n  v_add_u32 v{T+7}, s37, v{T+1}")
    a(f"  v_lshlrev_b32 v{T+4}, 10, v{T+7}\n  v_lshl_add_u32 v{T+4}, v{T+2}, 8, v{T+4}\n  v_lshl_add_u32 v{T+4}, v{T+3}, 4, v{T+4}")
    a(f"  v_lshlrev_b32 v{T+5}, 4, v{T+7}\n  v_add_u32 v{T+5}, {LDS_C}, v{T+5}")
    a(f"  s_mov_b32 s37, {QSCALE}\n  s_mov_b32 s76, 0xffff0000")
    a(f"  s_waitcnt vmcnt({8*pre})")
    A_, B_, C_ = O, O+8, O+16
    def unpack(dst, src, n):
        for i in range(n):
            a(f"  v_lshlrev_b32 v{dst+2*i}, 16, v{src+i}\n  v_and_b32 v{dst+2*i+1}, s76, v{src+i}")
    unpack(A_, KS, 4); unpack(B_, KZ, 4)
    for i in range(8): a(f"  v_mul_f32 v{A_+i}, s37, v{A_+i}")
    CH = S
    for h in range(4):
        unpack(C_, Q+4*h, 4)
        for i in range(8): a(f"  v_mul_f32 v{C_+i}, v{C_+i}, v{A_+i}")
        for i in range(4): a(f"  v_cvt_pk_bf16_f32 v{Q+4*h+i}, v{C_+2*i}, v{C_+2*i+1}")
        a(f"  ds_write_b128 v{T+4}, {r4(Q+4*h)} offset:{LDS_QP+h*64}")
        unpack(C_, Q+4*h, 4)
        a(f"  v_mul_f32 v{CH+h}, v{C_}, v{B_}")
        for i in range(1, 8): a(f"  v_fmac_f32 v{CH+h}, v{C_+i}, v{B_+i}")
    for rr in (8, 4, 2, 1):
        a("  s_nop 1")
        for h in range(4): a(f"  v_add_f32_dpp v{CH+h}, v{CH+h}, v{CH+h} row_ror:{rr} row_mask:0xf bank_mask:0xf")
    a(f"  ds_write_b128 v{T+5}, {r4(CH)}")
    for b in range(pre, D): issueK(b)
    if late: dma()
    a(f"  s_cmp_lg_u32 s{sW}, 0\n  s_cbranch_scc1 L_noclear")
    for i in range(4): a(f"  v_mov_b32 v{Z+i}, -1")
    a(f"  v_lshlrev_b32 v{T+7}, 3, v0")
    a(f"  buffer_store_dwordx4 {r4(Z)}, v{T+6}, {W}, s87 offen sc0 sc1\n  buffer_store_dwordx4 {r4(Z)}, v{T+6}, {W}, s87 offen offset:1024 sc0 sc1")
    a(f"  buffer_store_dwordx2 {r2(Z)}, v{T+7}, {W}, s87 offen offset:2048 sc0 sc1\n  s_nop 1\nL_noclear:")
    for i in range(36): a(f"  v_mov_b32 v{O+i}, 0")
    a(f"  v_mov_b32 v{vM}, 0xff7fffff\n  v_mov_b32 v{vL}, 0")
    a("  s_waitcnt lgkmcnt(0)\n  s_barrier")
    def readQP():
        for m in range(4): a(f"  ds_read_b128 {r4(QP+4*m)}, v{vQP} offset:{LDS_QP+m*256}")
        a(f"  ds_read_b32 v{vCc}, v{vC}")
        a(f"  v_add_u32 v{vQP}, 1024, v{vQP}\n  v_add_u32 v{vC}, 16, v{vC}")
    readQP()
    def cvt(r, n):
        for e in range(n): a(f"  v_cvt_f32_i32 v{r+e}, v{r+e}")
    def stepK(b, t, behind, issue, nextgroup):
        k = R_(b)
        for m in range(4):
            a(f"  s_waitcnt vmcnt({behind + 6 - 2*m})")
            cvt(k+8*m, 8)
            d = PK+4*m if m < km else k+8*m
            for i in range(4): a(f"  v_cvt_pk_bf16_f32 v{d+i}, v{k+8*m+2*i}, v{k+8*m+2*i+1}")
        if km < 4:
            a(f"  s_mov_b64 vcc, {mEven}\n  s_nop 0")
            for m in range(km, 4):
                for e in range(2): a(f"  v_cndmask_b32_dpp v{PK+4*m+e}, v{k+8*m+2+e}, v{k+8*m+e}, vcc quad_perm:[1,0,3,2] row_mask:0xf bank_mask:0xf")
            a(f"  s_mov_b64 vcc, {mOdd}")
            for m in range(km, 4):
                for e in range(2): a(f"  v_cndmask_b32_dpp v{PK+4*m+2+e}, v{k+8*m+e}, v{k+8*m+2+e}, vcc quad_perm:[1,0,3,2] row_mask:0xf bank_mask:0xf")
        issue(b)
        a("  s_waitcnt lgkmcnt(0)")
        for m in range(4):
            a(f"  v_mfma_f32_16x16x32_bf16 {r4(S)}, {r4(PK+4*m)}, {r4(QP+4*m)}, {'0' if m == 0 else r4(S)}")
        a("  s_nop 7\n  s_nop 1")
        a(f"  v_cndmask_b32 v{T}, v{S}, v{S+1}, {mB2}\n  v_cndmask_b32 v{T+1}, v{S+2}, v{S+3}, {mB2}\n  v_cndmask_b32 v{T}, v{T}, v{T+1}, {mB3}")
        a(f"  v_sub_f32 v{T}, v{T}, v{vCc}\n  ds_write_b32 v{vX}, v{T} offset:{t*256}\n  v_max_f32 v{vM}, v{vM}, v{T}")
        if nextgroup: readQP()
    a(f"  s_mov_b32 s77, {NSTEP//D-1}\nL_loopK:")
    for t in range(D): stepK(t, t, 8*(D-1), issueK, t & 1)
    a(f"  v_add_u32 v{vX}, {D*256}, v{vX}\n  s_sub_u32 s77, s77, 1\n  s_cmp_lg_u32 s77, 0\n  s_cbranch_scc1 L_loopK")
    for t in range(D): stepK(t, t, 8*(D-1-t) + NV*t, issueV, (t & 1) and t+1 < D)
    a(f"  v_subrev_u32 v{vX}, {(NSTEP-D)*256}, v{vX}")
    def allreduce(v, op):
        for rr in (4, 8): a(f"  s_nop 1\n  {op}_dpp v{v}, v{v}, v{v} row_ror:{rr} row_mask:0xf bank_mask:0xf")
        for sw in (16, 32): a(f"  v_mov_b32 v{T+7}, v{v}\n  s_nop 1\n  v_permlane{sw}_swap_b32 v{v}, v{T+7}\n  {op} v{v}, v{v}, v{T+7}")
    allreduce(vM, "v_max_f32")
    if late: a("  s_barrier")
    def ldsV(t, x, vs, vz):
        a(f"  ds_read_b32 v{x}, v{vX} offset:{t*256}\n  ds_read_u16 v{vs}, v{vVS} offset:{t*128}\n  ds_read_b64 {r2(vz)}, v{vVZ} offset:{t*128+LDS_VZ-LDS_VS}")
    def soft(x, vs, p):
        a(f"  v_sub_f32 v{x}, v{x}, v{vM}\n  v_exp_f32 v{x}, v{x}\n  v_lshlrev_b32 v{vs}, 16, v{vs}\n  v_mul_f32 v{vs}, v{vs}, v{x}\n  v_add_f32 v{vL}, v{vL}, v{x}\n  s_nop 0")
        a(f"  v_mov_b32_dpp v{x}, v{vs} row_ror:12 row_mask:0xf bank_mask:0xf\n  v_cvt_pk_bf16_f32 v{p}, v{vs}, v{x}\n  s_nop 1")
        a(f"  v_mov_b32_dpp v{p+1}, v{p} row_ror:8 row_mask:0xf bank_mask:0xf")
    PB = QP
    def partner_loads():
        a(f"  buffer_load_dwordx4 {r4(PB)}, v{T+6}, {W}, s88 offen sc0 sc1\n  buffer_load_dwordx4 {r4(PB+4)}, v{T+6}, {W}, s88 offen offset:1024 sc0 sc1")
        a(f"  buffer_load_dwordx2 {r2(PB+8)}, v{T+7}, {W}, s88 offen offset:2048 sc0 sc1")
    def stepV(b, t, behind, issue, p, vz, own, last=False):
        v = R_(b)
        if own: ldsV(t, T, T+1, vz)
        for s in range(4):
            a(f"  s_waitcnt vmcnt({behind + (3-s)*NV//4})")
            cvt(v+8*s, 8)
            if s & 1:
                for x in range(8): a(f"  v_cvt_pk_bf16_f32 v{PK+2*x+(s>>1)}, v{v+8*(s-1)+x}, v{v+8*s+x}")
            if s == 1 and own:
                a("  s_waitcnt lgkmcnt(0)"); soft(T, T+1, p)
        if issue: issueV(b)
        else: a("  s_nop 1")
        if last:
            a(f"  s_cmp_lg_u32 s{sW}, 0\n  s_cbranch_scc1 L_nopf\n  s_waitcnt lgkmcnt(0)")
            a(f"  s_lshr_b32 s90, s90, s89\n  s_and_b32 s90, s90, 0xffff\n  s_cbranch_scc0 L_nopf")
            partner_loads()
            a("L_nopf:")
        a(f"  v_mfma_f32_16x16x16_bf16 {r4(Z)}, {r2(vz)}, {r2(p)}, {r4(Z)}")
        for x in range(8): a(f"  v_mfma_f32_16x16x16_bf16 {r4(O+4*x)}, {r2(PK+2*x)}, {r2(p)}, {r4(O+4*x)}")
    a(f"  s_mov_b32 s77, {NSTEP//D-1}\nL_loopV:")
    for t in range(D): stepV(t, t, NV*(D-1), True, P, VZr, True)
    a(f"  v_add_u32 v{vX}, {D*256}, v{vX}\n  v_add_u32 v{vVS}, {D*128}, v{vVS}\n  v_add_u32 v{vVZ}, {D*128}, v{vVZ}")
    a("  s_sub_u32 s77, s77, 1\n  s_cmp_lg_u32 s77, 0\n  s_cbranch_scc1 L_loopV")
    assert D <= 4
    XS = T
    for t in range(D): ldsV(t, XS+2*t, XS+2*t+1, QP+8+2*t if t < 1 or True else 0)
    a("  s_waitcnt lgkmcnt(0)")
    PT = [S, S+2, P, VZr]
    for t in range(D): soft(XS+2*t, XS+2*t+1, PT[t])
    allreduce(vL, "v_add_f32")
    a(f"  v_and_b32 v{T}, 15, v0\n  v_lshrrev_b32 v{T+1}, 4, v0\n  s_lshl_b32 s37, s{sW}, 5\n  s_add_u32 s37, s37, {LDS_ML}\n  v_lshl_add_u32 v{T+3}, v{T}, 3, s37")
    a(f"  s_lshl_b32 s37, s{sW}, 11\n  s_add_u32 s37, s37, {LDS_O}")
    a(f"  v_lshlrev_b32 v{T+2}, 9, v{T}\n  v_lshl_add_u32 v{T+2}, v{T+1}, {5 if vx == 2 else 6}, v{T+2}\n  v_add_u32 v{T+2}, s37, v{T+2}")
    a(f"  v_cmp_gt_u32 s[62:63], 4, v{T}\n  v_lshlrev_b32 v{T+6}, 4, v0\n  v_lshlrev_b32 v{T+7}, 3, v0")
    a(f"  s_mov_b64 exec, s[62:63]\n  ds_write_b64 v{T+3}, {r2(vM)}\n  s_mov_b64 exec, -1")
    a(f"  v_lshlrev_b32 v{T+4}, 5, v0\n  v_lshlrev_b32 v{T+5}, 3, v{T+1}")
    for t in range(D):
        if NSTEP - D + t == max(tk, NSTEP - D):
            a(f"  s_cmp_lg_u32 s{sW}, 0\n  s_cbranch_scc1 L_noticket\n  s_atomic_add s90, s[20:21], s91 glc\nL_noticket:")
        stepV(t, t, NV*(D-1-t), False, PT[t], QP+8+2*t, False, last=(t == D-1))
    if stamps: a("  s_memrealtime s[84:85]")
    R = R_(0)
    a("  s_nop 7\n  s_mov_b64 exec, s[62:63]")
    if vx == 2:
        for c in range(4):
            for r in range(4):
                for e in range(2): a(f"  v_sub_f32 v{R+8*c+2*r+e}, v{O+4*(2*c+e)+r}, v{Z}")
            a(f"  ds_write_b128 v{T+2}, {r4(R+8*c)} offset:{c*128}\n  ds_write_b128 v{T+2}, {r4(R+8*c+4)} offset:{c*128+16}")
    else:
        for hf in range(2):
            for r in range(4):
                for e in range(4): a(f"  v_sub_f32 v{R+16*hf+4*r+e}, v{O+16*hf+4*e+r}, v{Z}")
                a(f"  ds_write_b128 v{T+2}, {r4(R+16*hf+4*r)} offset:{hf*256+r*16}")
    a("  s_mov_b64 exec, -1\n  s_waitcnt lgkmcnt(0)\n  s_barrier")
    a(f"  s_cmp_lg_u32 s{sW}, 0\n  s_cbranch_scc1 L_end")
    ML = PK
    for w in range(4): a(f"  ds_read_b64 {r2(ML+2*w)}, v{T+5} offset:{LDS_ML+w*32}")
    for w in range(4): a(f"  ds_read_b128 {r4(R+8*w)}, v{T+4} offset:{LDS_O+w*2048}\n  ds_read_b128 {r4(R+8*w+4)}, v{T+4} offset:{LDS_O+w*2048+16}")
    a("  s_waitcnt lgkmcnt(8)")
    a(f"  v_max3_f32 v{vM}, v{ML}, v{ML+2}, v{ML+4}\n  v_max_f32 v{vM}, v{vM}, v{ML+6}")
    for w in range(4): a(f"  v_sub_f32 v{ML+2*w}, v{ML+2*w}, v{vM}")
    for w in range(4): a(f"  v_exp_f32 v{ML+2*w}, v{ML+2*w}")
    a(f"  s_nop 0\n  v_mul_f32 v{vL}, v{ML}, v{ML+1}")
    for w in range(1, 4): a(f"  v_fmac_f32 v{vL}, v{ML+2*w}, v{ML+2*w+1}")
    a("  s_waitcnt lgkmcnt(0)")
    for i in range(8): a(f"  v_mul_f32 v{O+i}, v{ML}, v{R+i}")
    for w in range(1, 4):
        for i in range(8): a(f"  v_fmac_f32 v{O+i}, v{ML+2*w}, v{R+8*w+i}")
    a("  s_cmp_lg_u32 s90, 0\n  s_cbranch_scc1 L_second")
    a(f"  buffer_store_dwordx4 {r4(O)}, v{T+6}, {W}, s87 offen sc0 sc1\n  buffer_store_dwordx4 {r4(O+4)}, v{T+6}, {W}, s87 offen offset:1024 sc0 sc1")
    a(f"  buffer_store_dwordx2 {r2(vM)}, v{T+7}, {W}, s87 offen offset:2048 sc0 sc1")
    a("  s_branch L_fin\nL_repoll:")
    partner_loads()
    a("L_second:\n  s_waitcnt vmcnt(0)")
    a(f"  v_max3_u32 v{T}, v{PB}, v{PB+1}, v{PB+2}")
    for i in (3, 5, 7): a(f"  v_max3_u32 v{T}, v{T}, v{PB+i}, v{PB+i+1}")
    a(f"  v_max_u32 v{T}, v{T}, v{PB+9}\n  v_cmp_eq_u32 vcc, -1, v{T}\n  s_cbranch_vccnz L_repoll")
    a(f"  v_max_f32 v{T}, v{vM}, v{PB+8}\n  v_sub_f32 v{T+1}, v{vM}, v{T}\n  v_sub_f32 v{T+2}, v{PB+8}, v{T}")
    a(f"  v_exp_f32 v{T+1}, v{T+1}\n  v_exp_f32 v{T+2}, v{T+2}\n  s_nop 0")
    a(f"  v_mul_f32 v{T+3}, v{T+1}, v{vL}\n  v_fmac_f32 v{T+3}, v{T+2}, v{PB+9}\n  v_rcp_f32 v{T+3}, v{T+3}\n  s_nop 0")
    a(f"  v_mul_f32 v{T+1}, v{T+1}, v{T+3}\n  v_mul_f32 v{T+2}, v{T+2}, v{T+3}")
    for i in range(8): a(f"  v_mul_f32 v{O+i}, v{O+i}, v{T+1}")
    for i in range(8): a(f"  v_fmac_f32 v{O+i}, v{PB+i}, v{T+2}")
    for i in range(4): a(f"  v_cvt_pk_bf16_f32 v{O+8+i}, v{O+2*i}, v{O+2*i+1}")
    a(f"  buffer_store_dwordx4 {r4(O+8)}, v{T+6}, s[{sOut}:{sOut+3}], s39 offen {oflags}")
    a("L_fin:")
    if stamps:
        a("  s_waitcnt vmcnt(0)\n  s_memrealtime s[80:81]\n  s_getreg_b32 s82, hwreg(HW_REG_XCC_ID)\n  s_waitcnt lgkmcnt(0)")
        a(f"  s_lshl_b32 s32, s2, 4\n  s_add_u32 s32, s32, 0x100000\n  v_mov_b32 v{O}, s70\n  v_mov_b32 v{O+1}, s80\n  v_mov_b32 v{O+2}, s82\n  v_mov_b32 v{O+3}, s84")
        a(f"  s_mov_b64 exec, 1\n  buffer_store_dwordx4 {r4(O)}, off, {W}, s32")
    a("L_end:\n  s_endpgm")
    a('.section .rodata,"a"\n.p2align 6')
    a(f".amdhsa_kernel {name}\n  .amdhsa_next_free_vgpr {nv}\n  .amdhsa_next_free_sgpr 96\n  .amdhsa_accum_offset {min(256,(nv+3)//4*4)}\n  .amdhsa_group_segment_fixed_size 0\n  .amdhsa_kernarg_size 80\n  .amdhsa_user_sgpr_count 2\n  .amdhsa_user_sgpr_kernarg_segment_ptr 1\n  .amdhsa_system_sgpr_workgroup_id_x 1\n.end_amdhsa_kernel")
    return "\n".join(L) + "\n"
if __name__ == "__main__":
    kw = json.loads(sys.argv[2]) if len(sys.argv) > 2 else {}
    open(sys.argv[1], "w").write(gen(**kw))
```

```python
import struct, sys, json
KNAME = "standalone__kv_cache_quant_int4_int2_kv_with_per_channel_or_per_token_scales__sampling_kernel"
HEADER = open("standalone__kv_cache_quant_int4_int2_kv_with_per_channel_or_per_token_scales__sampling.s.ref").read().split("; Override launch")[0]
def f32(x): return "0x%08x" % struct.unpack("<I", struct.pack("<f", x))[0]
QSCALE = f32((128.0 ** -0.5) * 1.4426950408889634)
LDS_QP, LDS_C, LDS_VS, LDS_VZ, LDS_O, LDS_ML, LDS_X = 0, 0x4000, 0x4400, 0x5400, 0x6400, 0x8400, 0x8800

def gen(name=KNAME, D=4, lds=90112, flags="nt", stamps=False, sflags='nt', km=2, pre=2, tk=29, oflags='', vx=2, late=0, kord=0, midat=0, pm=4, kmb=None, hfirst=0, ilv=0, dot=0, vsw=32, pk=0, bark=0, barv=0):
    mord = [[0,1,2,3], [3,2,1,0], [2,3,0,1], [2,0,3,1], [3,2,0,1], [0,2,1,3]][hfirst]
    if vx == 4: vsw = 0
    def vxof(t): return 2 if t < vsw else 4
    def nvof(t): return 0 if t >= 32 else (16 if t < vsw else 8)
    if kmb is None: kmb = km
    def kmof(t): return kmb if (t >> 1) & 1 else km
    NSTEP = 32
    L = []; a = L.append
    a(HEADER.rstrip())
    a(f"; @launch grid=(256,1,1) block=(256,1,1) lds={lds}")
    a('.amdgcn_target "amdgcn-amd-amdhsa--gfx950"\n.text')
    a(f".globl {name}\n.p2align 8\n.type {name},@function\n{name}:")
    vKoff, vVoff, vQP, vC, vVS = 1, 2, 3, 4, 5
    vM, vL, vCc, vKh = 6, 7, 8, 9
    S = 10; P = 14; VZr = 16; vVZ = 18; vX = 19; T = 20
    QP = 28; PK = 44; O = 60; Z = 92; RAW = 96
    def R_(b): return RAW + 32*b
    nv = RAW + 32*D
    vV4 = vVoff if vsw == 0 else vC
    def r4(x): return f"v[{x}:{x+3}]"
    def r2(x): return f"v[{x}:{x+1}]"
    sK, sV, sG, sWS, sOut = 40, 44, 48, 52, 56
    sPair, sHalf, sSo, sSv, sW = 33, 34, 36, 32, 3
    mEven, mOdd, mB2, mB3 = "s[92:93]", "s[94:95]", "s[68:69]", "s[60:61]"
    def srd(d, lo, n):
        a(f"  s_mov_b32 s{d}, s{lo}\n  s_and_b32 s{d+1}, s{lo+1}, 0xffff\n  s_mov_b32 s{d+2}, {n}\n  s_mov_b32 s{d+3}, 0x20000")
    a("  s_cmp_ge_u32 s2, 256\n  s_cbranch_scc1 L_end")
    if stamps: a("  s_memrealtime s[70:71]")
    a("  s_load_dwordx16 s[4:19], s[0:1], 0\n  s_load_dwordx4 s[20:23], s[0:1], 64")
    a("  v_lshrrev_b32 v1, 6, v0\n  v_and_b32 v0, 63, v0")
    if stamps: a("  s_mov_b32 s83, s2")
    if pm > 1:
        lg = pm.bit_length() - 1
        a(f"  s_and_b32 s33, s2, {pm-1}\n  s_lshl_b32 s33, s33, 1\n  s_bfe_u32 s34, s2, {hex(0x10000 | lg)}\n  s_or_b32 s33, s33, s34\n  s_andn2_b32 s2, s2, {2*pm-1}\n  s_or_b32 s2, s2, s33")
    a(f"  s_lshr_b32 s{sPair}, s2, 1")
    a(f"  v_readfirstlane_b32 s{sW}, v1")
    a(f"  v_and_b32 v{T}, 15, v0\n  v_lshrrev_b32 v{T+1}, 4, v0")
    a(f"  v_lshlrev_b32 v{vKoff}, 9, v{T}\n  v_lshl_add_u32 v{vKoff}, v{T+1}, 4, v{vKoff}")
    a(f"  v_and_b32 v{T+2}, 14, v0\n  v_lshlrev_b32 v{vKh}, 9, v{T+2}\n  v_lshl_add_u32 v{vKh}, v{T+1}, 5, v{vKh}\n  v_and_b32 v{T+2}, 1, v0\n  v_lshl_add_u32 v{vKh}, v{T+2}, 4, v{vKh}")
    a(f"  v_lshlrev_b32 v{vVoff}, {3 if vsw else 4}, v{T}\n  v_lshl_add_u32 v{vVoff}, v{T+1}, 11, v{vVoff}")
    a(f"  s_lshl_b32 s{sSo}, s2, 20\n  s_lshl_b32 s37, s{sW}, 13\n  s_add_u32 s{sSo}, s{sSo}, s37\n  s_mov_b32 s{sSv}, s{sSo}")
    a(f"  v_lshrrev_b32 v{T+2}, 2, v{T}\n  v_and_b32 v{T+3}, 3, v{T}")
    a(f"  v_and_b32 v{T+4}, 1, v{T+1}\n  v_mad_i32_i24 v{T+4}, v{T+4}, {kmb-km}, {km}")
    a(f"  v_cmp_gt_u32 vcc, v{T+4}, v{T+2}\n  v_lshlrev_b32 v{T+4}, 4, v{T+3}\n  v_lshlrev_b32 v{T+5}, 3, v{T+3}\n  v_cndmask_b32 v{T+4}, v{T+4}, v{T+5}, vcc")
    a(f"  v_lshl_add_u32 v{T+4}, v{T+2}, 6, v{T+4}")
    a(f"  v_cndmask_b32 v{P}, 8, 32, vcc\n  v_add_u32 v{P}, v{P}, v{T+4}")
    a(f"  v_lshl_add_u32 v{T+5}, v{T+1}, 8, v{T+4}\n  v_lshl_add_u32 v{P+1}, v{T+1}, 8, v{P}")
    a(f"  v_lshlrev_b32 v{T+6}, 4, v0")
    a(f"  s_lshl_b32 s38, s2, 12\n  s_lshl_b32 s37, s{sW}, 10\n  s_add_u32 s38, s38, s37")
    a(f"  s_lshl_b32 s39, s{sPair}, 10")
    a("  s_waitcnt lgkmcnt(0)")
    KS, KZ, Q = QP, QP+4, PK
    def dma():
        srd(64, 14, 1 << 20); srd(72, 16, 1 << 20)
        a(f"  s_lshl_b32 s37, s{sW}, 10")
        a(f"  s_add_u32 m0, s37, {LDS_VS}\n  s_nop 0\n  buffer_load_dwordx4 v{T+6}, s[64:67], s38 offen {sflags} lds")
        a(f"  s_add_u32 m0, s37, {LDS_VZ}\n  s_nop 0\n  buffer_load_dwordx4 v{T+6}, s[72:75], s38 offen {sflags} lds")
    srd(24, 10, 1 << 20); srd(28, 12, 1 << 20); srd(sG, 4, 1 << 17)
    a(f"  buffer_load_dwordx2 {r2(KS)}, v{T+5}, s[24:27], s38 offen {sflags}\n  buffer_load_dwordx2 {r2(KS+2)}, v{P+1}, s[24:27], s38 offen {sflags}")
    a(f"  buffer_load_dwordx2 {r2(KZ)}, v{T+5}, s[28:31], s38 offen {sflags}\n  buffer_load_dwordx2 {r2(KZ+2)}, v{P+1}, s[28:31], s38 offen {sflags}")
    for h in range(4):
        a(f"  buffer_load_dwordx2 {r2(Q+4*h)}, v{T+4}, s[{sG}:{sG+3}], s39 offen offset:{h*256} {sflags}")
        a(f"  buffer_load_dwordx2 {r2(Q+4*h+2)}, v{P}, s[{sG}:{sG+3}], s39 offen offset:{h*256} {sflags}")
    if late != 1: dma()
    srd(sK, 6, 1 << 28); srd(sV, 8, 1 << 28)
    korder = list(range(8)) if kord == 0 else [n for c in range(4) for n in range(8) if 0]
    def issueK(b, t):
        km = kmof(t)
        for n in [2*m+i for m in mord for i in (0, 1)]:
            if n < 2*km: a(f"  buffer_load_dwordx4 {r4(R_(b)+4*n)}, v{vKoff}, s[{sK}:{sK+3}], s{sSo} offen offset:{64*n} {flags}")
            else: a(f"  buffer_load_dwordx4 {r4(R_(b)+4*n)}, v{vKh}, s[{sK}:{sK+3}], s{sSo} offen offset:{(n&1)*512+(n>>1)*128} {flags}")
        a(f"  s_add_u32 s{sSo}, s{sSo}, 32768")
    def issueV(b, t):
        if vxof(t) == 2:
            for n in range(16): a(f"  buffer_load_dwordx2 {r2(R_(b)+2*n)}, v{vVoff}, s[{sV}:{sV+3}], s{sSv} offen offset:{n*128} {flags}")
        else:
            for n in range(8): a(f"  buffer_load_dwordx4 {r4(R_(b)+4*n)}, v{vV4}, s[{sV}:{sV+3}], s{sSv} offen offset:{n*256} {flags}")
        a(f"  s_add_u32 s{sSv}, s{sSv}, 32768")
    for b in range(pre): issueK(b, b)
    srd(sWS, 22, 1 << 21); srd(sOut, 18, 1 << 17)
    W = f"s[{sWS}:{sWS+3}]"
    a(f"  s_lshl_b32 s87, s2, 12\n  s_xor_b32 s88, s87, 4096")
    a(f"  s_and_b32 s89, s{sPair}, 1\n  s_lshl_b32 s89, s89, 4\n  s_lshl_b32 s90, 1, s89\n  s_lshr_b32 s91, s{sPair}, 1\n  s_lshl_b32 s91, s91, 2")
    for m, v in ((92, 0x55555555), (94, 0xaaaaaaaa), (68, 0xf0f0f0f0), (60, 0xff00ff00)): a(f"  s_mov_b32 s{m}, {hex(v)}\n  s_mov_b32 s{m+1}, s{m}")
    a(f"  v_and_b32 v{vC}, 3, v0\n  v_lshlrev_b32 v{vQP}, 6, v{vC}\n  v_lshl_add_u32 v{vQP}, v{T+1}, 4, v{vQP}")
    a(f"  v_lshlrev_b32 v{vC}, 2, v{vC}\n  v_add_u32 v{vC}, {LDS_C}, v{vC}")
    a(f"  s_lshl_b32 s37, s{sW}, 5\n  s_add_u32 s37, s37, {LDS_VS}\n  v_lshl_add_u32 v{vVZ}, v{T+1}, 3, s37\n  v_lshl_add_u32 v{vVS}, v{T+2}, 1, v{vVZ}")
    a(f"  s_lshl_b32 s37, s{sW}, 13\n  s_add_u32 s37, s37, {LDS_X}\n  v_lshl_add_u32 v{vX}, v0, 2, s37")
    a(f"  s_lshl_b32 s37, s{sW}, 2\n  v_add_u32 v{T+7}, s37, v{T+1}")
    a(f"  v_lshlrev_b32 v{T+4}, 10, v{T+7}\n  v_lshl_add_u32 v{T+4}, v{T+2}, 8, v{T+4}\n  v_lshl_add_u32 v{T+4}, v{T+3}, 4, v{T+4}")
    a(f"  v_lshlrev_b32 v{T+5}, 4, v{T+7}\n  v_add_u32 v{T+5}, {LDS_C}, v{T+5}")
    a(f"  s_mov_b32 s37, {QSCALE}\n  s_mov_b32 s76, 0xffff0000")
    a(f"  s_waitcnt vmcnt({8*pre})")
    if stamps and midat == 4: a("  s_memrealtime s[84:85]")
    A_, B_, C_ = O, O+8, O+16
    def unpack(dst, src, n):
        for i in range(n):
            a(f"  v_lshlrev_b32 v{dst+2*i}, 16, v{src+i}\n  v_and_b32 v{dst+2*i+1}, s76, v{src+i}")
    n0 = len(L)
    for b in range(pre, D): issueK(b, b)
    pend = "\n".join(L[n0:]).split("\n") if len(L) > n0 else []; del L[n0:]
    def drain(n):
        while pend and (n > 0 or "buffer" not in pend[0]):
            n -= "buffer" in pend[0]; a(pend.pop(0))
    CH = S
    if dot:
        a("  s_mov_b32 s78, s37")
        unpack(A_, KS, 4)
        for i in range(0, 8, 2): a(f"  v_pk_mul_f32 {r2(A_+i)}, {r2(A_+i)}, s[78:79] op_sel_hi:[1,0]")
    else:
        unpack(A_, KS, 4); unpack(B_, KZ, 4)
        for i in range(8): a(f"  v_mul_f32 v{A_+i}, s37, v{A_+i}")
    for h in range(4):
        drain(ilv)
        unpack(C_, Q+4*h, 4)
        if dot:
            for i in range(0, 8, 2): a(f"  v_pk_mul_f32 {r2(C_+i)}, {r2(C_+i)}, {r2(A_+i)}")
        else:
            for i in range(8): a(f"  v_mul_f32 v{C_+i}, v{C_+i}, v{A_+i}")
        for i in range(4): a(f"  v_cvt_pk_bf16_f32 v{Q+4*h+i}, v{C_+2*i}, v{C_+2*i+1}")
        a(f"  ds_write_b128 v{T+4}, {r4(Q+4*h)} offset:{LDS_QP+h*64}")
        if dot:
            for i in range(4): a(f"  v_dot2_f32_bf16 v{CH+h}, v{Q+4*h+i}, v{KZ+i}, {'0' if i == 0 else 'v%d' % (CH+h)}")
        else:
            unpack(C_, Q+4*h, 4)
            a(f"  v_mul_f32 v{CH+h}, v{C_}, v{B_}")
            for i in range(1, 8): a(f"  v_fmac_f32 v{CH+h}, v{C_+i}, v{B_+i}")
    for rr in (8, 4, 2, 1):
        a("  s_nop 2" if rr == 8 else "  s_nop 0")
        for h in range(4): a(f"  v_add_f32_dpp v{CH+h}, v{CH+h}, v{CH+h} row_ror:{rr} row_mask:0xf bank_mask:0xf")
    a(f"  ds_write_b128 v{T+5}, {r4(CH)}")
    drain(99)
    if late == 1: dma()
    a(f"  s_cmp_lg_u32 s{sW}, 0\n  s_cbranch_scc1 L_noclear")
    for i in range(4): a(f"  v_mov_b32 v{Z+i}, -1")
    a(f"  v_lshlrev_b32 v{T+7}, 3, v0")
    a(f"  buffer_store_dwordx4 {r4(Z)}, v{T+6}, {W}, s87 offen sc0 sc1\n  buffer_store_dwordx4 {r4(Z)}, v{T+6}, {W}, s87 offen offset:1024 sc0 sc1")
    a(f"  buffer_store_dwordx2 {r2(Z)}, v{T+7}, {W}, s87 offen offset:2048 sc0 sc1\n  s_nop 1\nL_noclear:")
    for i in range(36): a(f"  v_mov_b32 v{O+i}, 0")
    a(f"  v_mov_b32 v{vM}, 0xff7fffff\n  v_mov_b32 v{vL}, 0")
    a("  s_waitcnt lgkmcnt(0)\n  s_barrier")
    def readQP():
        for m in range(4): a(f"  ds_read_b128 {r4(QP+4*m)}, v{vQP} offset:{LDS_QP+m*256}")
        a(f"  ds_read_b32 v{vCc}, v{vC}")
        a(f"  v_add_u32 v{vQP}, 1024, v{vQP}\n  v_add_u32 v{vC}, 16, v{vC}")
    if stamps and midat == 2: a("  s_memrealtime s[84:85]")
    if stamps and midat == 3: a(f"  s_waitcnt vmcnt({8*(D-1)})\n  s_memrealtime s[84:85]")
    readQP()
    def cvt(r, n):
        for e in range(n): a(f"  v_cvt_f32_i32 v{r+e}, v{r+e}")
    def stepK(b, t, behind, issue, nextgroup):
        k = R_(b); km = kmof(t)
        for mi, m in enumerate(mord):
            a(f"  s_waitcnt vmcnt({behind + 6 - 2*mi})")
            cvt(k+8*m, 8)
            d = PK+4*m if m < km else k+8*m
            for i in range(4): a(f"  v_cvt_pk_bf16_f32 v{d+i}, v{k+8*m+2*i}, v{k+8*m+2*i+1}")
        if km < 4:
            a(f"  s_mov_b64 vcc, {mEven}\n  s_nop 0")
            for m in range(km, 4):
                for e in range(2): a(f"  v_cndmask_b32_dpp v{PK+4*m+e}, v{k+8*m+2+e}, v{k+8*m+e}, vcc quad_perm:[1,0,3,2] row_mask:0xf bank_mask:0xf")
            a(f"  s_mov_b64 vcc, {mOdd}")
            for m in range(km, 4):
                for e in range(2): a(f"  v_cndmask_b32_dpp v{PK+4*m+2+e}, v{k+8*m+e}, v{k+8*m+2+e}, vcc quad_perm:[1,0,3,2] row_mask:0xf bank_mask:0xf")
        if bark and t % bark == 0: a("  s_barrier")
        if issue: issueK(b, t+D)
        else: issueV(b, b)
        a("  s_waitcnt lgkmcnt(0)")
        for m in range(4):
            a(f"  v_mfma_f32_16x16x32_bf16 {r4(S)}, {r4(PK+4*m)}, {r4(QP+4*m)}, {'0' if m == 0 else r4(S)}")
        a("  s_nop 7\n  s_nop 1")
        a(f"  v_cndmask_b32 v{T}, v{S}, v{S+1}, {mB2}\n  v_cndmask_b32 v{T+1}, v{S+2}, v{S+3}, {mB2}\n  v_cndmask_b32 v{T}, v{T}, v{T+1}, {mB3}")
        a(f"  v_sub_f32 v{T}, v{T}, v{vCc}\n  ds_write_b32 v{vX}, v{T} offset:{t*256}\n  v_max_f32 v{vM}, v{vM}, v{T}")
        if nextgroup: readQP()
    U = 4 if kmb != km else D
    a(f"  s_mov_b32 s77, {NSTEP//U-1}\nL_loopK:")
    for t in range(U): stepK(t % D, t, 8*(D-1), True, t & 1)
    a(f"  v_add_u32 v{vX}, {U*256}, v{vX}\n  s_sub_u32 s77, s77, 1\n  s_cmp_lg_u32 s77, 0\n  s_cbranch_scc1 L_loopK")
    for t in range(U):
        tt = max(0, t - (U-D))
        stepK(t % D, t, 8*(D-1-tt) + nvof(0)*tt, t < U-D, (t & 1) and t+1 < U)
    a(f"  v_subrev_u32 v{vX}, {(NSTEP-U)*256}, v{vX}")
    def allreduce(v, op):
        for rr in (4, 8): a(f"  s_nop 1\n  {op}_dpp v{v}, v{v}, v{v} row_ror:{rr} row_mask:0xf bank_mask:0xf")
        for sw in (16, 32): a(f"  v_mov_b32 v{T+7}, v{v}\n  s_nop 1\n  v_permlane{sw}_swap_b32 v{v}, v{T+7}\n  {op} v{v}, v{v}, v{T+7}")
    if stamps and midat == 1: a("  s_memrealtime s[84:85]")
    allreduce(vM, "v_max_f32")
    if late: a("  s_barrier")
    def ldsV(t, x, vs, vz):
        a(f"  ds_read_b32 v{x}, v{vX} offset:{t*256}\n  ds_read_u16 v{vs}, v{vVS} offset:{t*128}\n  ds_read_b64 {r2(vz)}, v{vVZ} offset:{t*128+LDS_VZ-LDS_VS}")
    def soft(x, vs, p):
        a(f"  v_sub_f32 v{x}, v{x}, v{vM}\n  v_exp_f32 v{x}, v{x}\n  v_lshlrev_b32 v{vs}, 16, v{vs}\n  v_mul_f32 v{vs}, v{vs}, v{x}\n  v_add_f32 v{vL}, v{vL}, v{x}\n  s_nop 0")
        a(f"  v_mov_b32_dpp v{x}, v{vs} row_ror:12 row_mask:0xf bank_mask:0xf\n  v_cvt_pk_bf16_f32 v{p}, v{vs}, v{x}\n  s_nop 1")
        a(f"  v_mov_b32_dpp v{p+1}, v{p} row_ror:8 row_mask:0xf bank_mask:0xf")
    PB = QP
    def partner_loads():
        a(f"  buffer_load_dwordx4 {r4(PB)}, v{T+6}, {W}, s88 offen sc0 sc1\n  buffer_load_dwordx4 {r4(PB+4)}, v{T+6}, {W}, s88 offen offset:1024 sc0 sc1")
        a(f"  buffer_load_dwordx2 {r2(PB+8)}, v{T+7}, {W}, s88 offen offset:2048 sc0 sc1")
    def stepV(b, t, g, issue, p, vz, own, last=False):
        v = R_(b); NV = nvof(g); behind = sum(nvof(g+i) for i in range(1, D))
        if own: ldsV(t, T, T+1, vz)
        for s in range(4):
            a(f"  s_waitcnt vmcnt({behind + (3-s)*NV//4})")
            cvt(v+8*s, 8)
            if s & 1:
                for x in range(8): a(f"  v_cvt_pk_bf16_f32 v{PK+2*x+(s>>1)}, v{v+8*(s-1)+x}, v{v+8*s+x}")
            if s == 1 and own:
                a("  s_waitcnt lgkmcnt(0)"); soft(T, T+1, p)
        if issue and barv and t % barv == 0: a("  s_barrier")
        if issue: issueV(b, g+D)
        else: a("  s_nop 1")
        if last:
            a(f"  s_cmp_lg_u32 s{sW}, 0\n  s_cbranch_scc1 L_nopf\n  s_waitcnt lgkmcnt(0)")
            a(f"  s_lshr_b32 s90, s90, s89\n  s_and_b32 s90, s90, 0xffff\n  s_cbranch_scc0 L_nopf")
            partner_loads()
            a("L_nopf:")
        a(f"  v_mfma_f32_16x16x16_bf16 {r4(Z)}, {r2(vz)}, {r2(p)}, {r4(Z)}")
        for x in range(8): a(f"  v_mfma_f32_16x16x16_bf16 {r4(O+4*x)}, {r2(PK+2*x)}, {r2(p)}, {r4(O+4*x)}")
    def adv(): a(f"  v_add_u32 v{vX}, {D*256}, v{vX}\n  v_add_u32 v{vVS}, {D*128}, v{vVS}\n  v_add_u32 v{vVZ}, {D*128}, v{vVZ}")
    def loopV(lab, g0, g1):
        n = (g1 - g0)//D
        if n <= 0: return
        if n > 1: a(f"  s_mov_b32 s77, {n}\n{lab}:")
        for t in range(D): stepV(t, t, g0+t, True, P, VZr, True)
        adv()
        if n > 1: a(f"  s_sub_u32 s77, s77, 1\n  s_cmp_lg_u32 s77, 0\n  s_cbranch_scc1 {lab}")
    if 0 < vsw < NSTEP:
        assert vsw % D == 0 and 2*D <= vsw <= NSTEP - D
        a(f"  v_and_b32 v{T}, 15, v0\n  v_lshl_add_u32 v{vV4}, v{T}, 3, v{vVoff}")
        loopV("L_loopV", 0, vsw - D)
        loopV("L_sw", vsw - D, vsw)
        a(f"  v_and_b32 v{T}, 15, v0\n  v_lshrrev_b32 v{T+1}, 4, v0\n  s_lshl_b32 s37, s{sW}, 11\n  s_add_u32 s37, s37, {LDS_O}")
        a(f"  v_cmp_gt_u32 s[62:63], 4, v{T}\n  v_lshl_add_u32 v{T+2}, v{T}, 9, s37\n  v_lshl_add_u32 v{T+3}, v{T+1}, 6, v{T+2}\n  v_lshl_add_u32 v{T+2}, v{T+1}, 5, v{T+2}")
        a("  s_nop 2\n  s_mov_b64 exec, s[62:63]")
        for x in range(8):
            for r in range(4): a(f"  ds_write_b32 v{T+2}, v{O+4*x+r} offset:{(x>>1)*128 + (2*r + (x&1))*4}")
        for x in range(8):
            for r in range(4): a(f"  ds_read_b32 v{O+4*x+r}, v{T+3} offset:{(x>>2)*256 + (4*r + (x&3))*4}")
        a("  s_mov_b64 exec, -1")
        loopV("L_loopW", vsw, NSTEP - D)
    else:
        loopV("L_loopV", 0, NSTEP - D)
    assert D <= 4
    XS = T
    for t in range(D): ldsV(t, XS+2*t, XS+2*t+1, QP+8+2*t if t < 1 or True else 0)
    a("  s_waitcnt lgkmcnt(0)")
    PT = [S, S+2, P, VZr]
    for t in range(D): soft(XS+2*t, XS+2*t+1, PT[t])
    allreduce(vL, "v_add_f32")
    a(f"  v_and_b32 v{T}, 15, v0\n  v_lshrrev_b32 v{T+1}, 4, v0\n  s_lshl_b32 s37, s{sW}, 5\n  s_add_u32 s37, s37, {LDS_ML}\n  v_lshl_add_u32 v{T+3}, v{T}, 3, s37")
    a(f"  s_lshl_b32 s37, s{sW}, 11\n  s_add_u32 s37, s37, {LDS_O}")
    a(f"  v_lshlrev_b32 v{T+2}, 9, v{T}\n  v_lshl_add_u32 v{T+2}, v{T+1}, {5 if vsw == 32 else 6}, v{T+2}\n  v_add_u32 v{T+2}, s37, v{T+2}")
    a(f"  v_cmp_gt_u32 s[62:63], 4, v{T}\n  v_lshlrev_b32 v{T+6}, 4, v0\n  v_lshlrev_b32 v{T+7}, 3, v0")
    a(f"  s_mov_b64 exec, s[62:63]\n  ds_write_b64 v{T+3}, {r2(vM)}\n  s_mov_b64 exec, -1")
    a(f"  v_lshlrev_b32 v{T+4}, 5, v0\n  v_lshlrev_b32 v{T+5}, 3, v{T+1}")
    for t in range(D):
        if NSTEP - D + t == max(tk, NSTEP - D):
            a(f"  s_cmp_lg_u32 s{sW}, 0\n  s_cbranch_scc1 L_noticket\n  s_atomic_add s90, s[20:21], s91 glc\nL_noticket:")
        stepV(t, t, NSTEP-D+t, False, PT[t], QP+8+2*t, False, last=(t == D-1))
    if stamps and midat == 0: a("  s_memrealtime s[84:85]")
    R = R_(0)
    a("  s_nop 7\n  s_mov_b64 exec, s[62:63]")
    if vsw == 32:
        for c in range(4):
            for r in range(4):
                for e in range(2): a(f"  v_sub_f32 v{R+8*c+2*r+e}, v{O+4*(2*c+e)+r}, v{Z}")
            a(f"  ds_write_b128 v{T+2}, {r4(R+8*c)} offset:{c*128}\n  ds_write_b128 v{T+2}, {r4(R+8*c+4)} offset:{c*128+16}")
    else:
        for hf in range(2):
            for r in range(4):
                for e in range(4): a(f"  v_sub_f32 v{R+16*hf+4*r+e}, v{O+16*hf+4*e+r}, v{Z}")
                a(f"  ds_write_b128 v{T+2}, {r4(R+16*hf+4*r)} offset:{hf*256+r*16}")
    a("  s_mov_b64 exec, -1\n  s_waitcnt lgkmcnt(0)\n  s_barrier")
    a(f"  s_cmp_lg_u32 s{sW}, 0\n  s_cbranch_scc1 L_end")
    ML = PK
    for w in range(4): a(f"  ds_read_b64 {r2(ML+2*w)}, v{T+5} offset:{LDS_ML+w*32}")
    for w in range(4): a(f"  ds_read_b128 {r4(R+8*w)}, v{T+4} offset:{LDS_O+w*2048}\n  ds_read_b128 {r4(R+8*w+4)}, v{T+4} offset:{LDS_O+w*2048+16}")
    a("  s_waitcnt lgkmcnt(8)")
    a(f"  v_max3_f32 v{vM}, v{ML}, v{ML+2}, v{ML+4}\n  v_max_f32 v{vM}, v{vM}, v{ML+6}")
    for w in range(4): a(f"  v_sub_f32 v{ML+2*w}, v{ML+2*w}, v{vM}")
    for w in range(4): a(f"  v_exp_f32 v{ML+2*w}, v{ML+2*w}")
    a(f"  s_nop 0\n  v_mul_f32 v{vL}, v{ML}, v{ML+1}")
    for w in range(1, 4): a(f"  v_fmac_f32 v{vL}, v{ML+2*w}, v{ML+2*w+1}")
    a("  s_waitcnt lgkmcnt(0)")
    if pk:
        for i in range(0, 8, 2): a(f"  v_pk_mul_f32 {r2(O+i)}, {r2(R+i)}, {r2(ML)} op_sel_hi:[1,0]")
        for w in range(1, 4):
            for i in range(0, 8, 2): a(f"  v_pk_fma_f32 {r2(O+i)}, {r2(R+8*w+i)}, {r2(ML+2*w)}, {r2(O+i)} op_sel_hi:[1,0,1]")
    else:
        for i in range(8): a(f"  v_mul_f32 v{O+i}, v{ML}, v{R+i}")
        for w in range(1, 4):
            for i in range(8): a(f"  v_fmac_f32 v{O+i}, v{ML+2*w}, v{R+8*w+i}")
    a("  s_cmp_lg_u32 s90, 0\n  s_cbranch_scc1 L_second")
    a(f"  buffer_store_dwordx4 {r4(O)}, v{T+6}, {W}, s87 offen sc0 sc1\n  buffer_store_dwordx4 {r4(O+4)}, v{T+6}, {W}, s87 offen offset:1024 sc0 sc1")
    a(f"  buffer_store_dwordx2 {r2(vM)}, v{T+7}, {W}, s87 offen offset:2048 sc0 sc1")
    a("  s_branch L_fin\nL_repoll:")
    partner_loads()
    a("L_second:\n  s_waitcnt vmcnt(0)")
    a(f"  v_max3_u32 v{T}, v{PB}, v{PB+1}, v{PB+2}")
    for i in (3, 5, 7): a(f"  v_max3_u32 v{T}, v{T}, v{PB+i}, v{PB+i+1}")
    a(f"  v_max_u32 v{T}, v{T}, v{PB+9}\n  v_cmp_eq_u32 vcc, -1, v{T}\n  s_cbranch_vccnz L_repoll")
    a(f"  v_max_f32 v{T}, v{vM}, v{PB+8}\n  v_sub_f32 v{T+1}, v{vM}, v{T}\n  v_sub_f32 v{T+2}, v{PB+8}, v{T}")
    a(f"  v_exp_f32 v{T+1}, v{T+1}\n  v_exp_f32 v{T+2}, v{T+2}\n  s_nop 0")
    a(f"  v_mul_f32 v{T+3}, v{T+1}, v{vL}\n  v_fmac_f32 v{T+3}, v{T+2}, v{PB+9}\n  v_rcp_f32 v{T+3}, v{T+3}\n  s_nop 0")
    if pk:
        a(f"  v_mul_f32 v{T}, v{T+1}, v{T+3}\n  v_mul_f32 v{T+2}, v{T+2}, v{T+3}")
        for i in range(0, 8, 2): a(f"  v_pk_mul_f32 {r2(O+i)}, {r2(O+i)}, {r2(T)} op_sel_hi:[1,0]")
        for i in range(0, 8, 2): a(f"  v_pk_fma_f32 {r2(O+i)}, {r2(PB+i)}, {r2(T+2)}, {r2(O+i)} op_sel_hi:[1,0,1]")
    else:
        a(f"  v_mul_f32 v{T+1}, v{T+1}, v{T+3}\n  v_mul_f32 v{T+2}, v{T+2}, v{T+3}")
        for i in range(8): a(f"  v_mul_f32 v{O+i}, v{O+i}, v{T+1}")
        for i in range(8): a(f"  v_fmac_f32 v{O+i}, v{PB+i}, v{T+2}")
    for i in range(4): a(f"  v_cvt_pk_bf16_f32 v{O+8+i}, v{O+2*i}, v{O+2*i+1}")
    a(f"  buffer_store_dwordx4 {r4(O+8)}, v{T+6}, s[{sOut}:{sOut+3}], s39 offen {oflags}")
    a("L_fin:")
    if stamps:
        a("  s_waitcnt vmcnt(0)\n  s_memrealtime s[80:81]\n  s_getreg_b32 s82, hwreg(HW_REG_XCC_ID)\n  s_waitcnt lgkmcnt(0)")
        a(f"  s_lshl_b32 s32, s83, 4\n  s_add_u32 s32, s32, 0x100000\n  v_mov_b32 v{O}, s70\n  v_mov_b32 v{O+1}, s80\n  v_mov_b32 v{O+2}, s82\n  v_mov_b32 v{O+3}, s84")
        a(f"  s_mov_b64 exec, 1\n  buffer_store_dwordx4 {r4(O)}, off, {W}, s32")
    a("L_end:\n  s_endpgm")
    a('.section .rodata,"a"\n.p2align 6')
    a(f".amdhsa_kernel {name}\n  .amdhsa_next_free_vgpr {nv}\n  .amdhsa_next_free_sgpr 96\n  .amdhsa_accum_offset {min(256,(nv+3)//4*4)}\n  .amdhsa_group_segment_fixed_size 0\n  .amdhsa_kernarg_size 80\n  .amdhsa_user_sgpr_count 2\n  .amdhsa_user_sgpr_kernarg_segment_ptr 1\n  .amdhsa_system_sgpr_workgroup_id_x 1\n.end_amdhsa_kernel")
    return "\n".join(L) + "\n"
if __name__ == "__main__":
    kw = json.loads(sys.argv[2]) if len(sys.argv) > 2 else {}
    open(sys.argv[1], "w").write(gen(**kw))
```

```python
import struct, sys, json
KNAME = "standalone__kv_cache_quant_int4_int2_kv_with_per_channel_or_per_token_scales__sampling_kernel"
HEADER = open("standalone__kv_cache_quant_int4_int2_kv_with_per_channel_or_per_token_scales__sampling.s.ref").read().split("; Override launch")[0]
def f32(x): return "0x%08x" % struct.unpack("<I", struct.pack("<f", x))[0]
QSCALE = f32((128.0 ** -0.5) * 1.4426950408889634)
LDS_QP, LDS_C, LDS_VS, LDS_VZ, LDS_O, LDS_ML, LDS_X = 0, 0x4000, 0x4400, 0x5400, 0x6400, 0x8400, 0x8800

def gen(name=KNAME, D=4, lds=90112, flags="nt", stamps=False, sflags='nt', km=2, pre=2, tk=29, oflags='', vx=2, late=0, kord=0, midat=0, pm=4, kmb=None, hfirst=0, ilv=0, dot=0, vsw=32, pk=0, bark=0, barv=0, cnt='', pnt='', lnt='', qb=0):
    assert not qb or kmb in (None, km)
    mord = [[0,1,2,3], [3,2,1,0], [2,3,0,1], [2,0,3,1], [3,2,0,1], [0,2,1,3]][hfirst]
    if vx == 4: vsw = 0
    def vxof(t): return 2 if t < vsw else 4
    def nvof(t): return 0 if t >= 32 else (16 if t < vsw else 8)
    if kmb is None: kmb = km
    def kmof(t): return kmb if (t >> 1) & 1 else km
    NSTEP = 32
    L = []; a = L.append
    a(HEADER.rstrip())
    a(f"; @launch grid=(256,1,1) block=(256,1,1) lds={lds}")
    a('.amdgcn_target "amdgcn-amd-amdhsa--gfx950"\n.text')
    a(f".globl {name}\n.p2align 8\n.type {name},@function\n{name}:")
    vKoff, vVoff, vQP, vC, vVS = 1, 2, 3, 4, 5
    vM, vL, vCc, vKh = 6, 7, 8, 9
    S = 10; P = 14; VZr = 16; vVZ = 18; vX = 19; T = 20
    QP = 28; PK = 44; O = 60; Z = 92; RAW = 96
    def R_(b): return RAW + 32*b
    nv = RAW + 32*D
    vV4 = vVoff if vsw == 0 else vC
    def r4(x): return f"v[{x}:{x+3}]"
    def r2(x): return f"v[{x}:{x+1}]"
    sK, sV, sG, sWS, sOut = 40, 44, 48, 52, 56
    sPair, sHalf, sSo, sSv, sW = 33, 34, 36, 32, 3
    mEven, mOdd, mB2, mB3 = "s[92:93]", "s[94:95]", "s[68:69]", "s[60:61]"
    def srd(d, lo, n):
        a(f"  s_mov_b32 s{d}, s{lo}\n  s_and_b32 s{d+1}, s{lo+1}, 0xffff\n  s_mov_b32 s{d+2}, {n}\n  s_mov_b32 s{d+3}, 0x20000")
    a("  s_cmp_ge_u32 s2, 256\n  s_cbranch_scc1 L_end")
    if stamps: a("  s_memrealtime s[70:71]")
    a("  s_load_dwordx16 s[4:19], s[0:1], 0\n  s_load_dwordx4 s[20:23], s[0:1], 64")
    a("  v_lshrrev_b32 v1, 6, v0\n  v_and_b32 v0, 63, v0")
    if stamps: a("  s_mov_b32 s83, s2")
    if pm > 1:
        lg = pm.bit_length() - 1
        a(f"  s_and_b32 s33, s2, {pm-1}\n  s_lshl_b32 s33, s33, 1\n  s_bfe_u32 s34, s2, {hex(0x10000 | lg)}\n  s_or_b32 s33, s33, s34\n  s_andn2_b32 s2, s2, {2*pm-1}\n  s_or_b32 s2, s2, s33")
    a(f"  s_lshr_b32 s{sPair}, s2, 1")
    a(f"  v_readfirstlane_b32 s{sW}, v1")
    a(f"  v_and_b32 v{T}, 15, v0\n  v_lshrrev_b32 v{T+1}, 4, v0")
    a(f"  v_lshlrev_b32 v{vKoff}, 9, v{T}\n  v_lshl_add_u32 v{vKoff}, v{T+1}, 4, v{vKoff}")
    a(f"  v_and_b32 v{T+2}, 14, v0\n  v_lshlrev_b32 v{vKh}, 9, v{T+2}\n  v_lshl_add_u32 v{vKh}, v{T+1}, 5, v{vKh}\n  v_and_b32 v{T+2}, 1, v0\n  v_lshl_add_u32 v{vKh}, v{T+2}, 4, v{vKh}")
    a(f"  v_lshlrev_b32 v{vVoff}, {3 if vsw else 4}, v{T}\n  v_lshl_add_u32 v{vVoff}, v{T+1}, 11, v{vVoff}")
    a(f"  s_lshl_b32 s{sSo}, s2, 20\n  s_lshl_b32 s37, s{sW}, 13\n  s_add_u32 s{sSo}, s{sSo}, s37\n  s_mov_b32 s{sSv}, s{sSo}")
    a(f"  v_lshrrev_b32 v{T+2}, 2, v{T}\n  v_and_b32 v{T+3}, 3, v{T}")
    a(f"  v_and_b32 v{T+4}, 1, v{T+1}\n  v_mad_i32_i24 v{T+4}, v{T+4}, {kmb-km}, {km}")
    a(f"  v_cmp_gt_u32 vcc, v{T+4}, v{T+2}\n  v_lshlrev_b32 v{T+4}, 4, v{T+3}\n  v_lshlrev_b32 v{T+5}, 3, v{T+3}\n  v_cndmask_b32 v{T+4}, v{T+4}, v{T+5}, vcc")
    a(f"  v_lshl_add_u32 v{T+4}, v{T+2}, 6, v{T+4}")
    a(f"  v_cndmask_b32 v{P}, 8, 32, vcc\n  v_add_u32 v{P}, v{P}, v{T+4}")
    a(f"  v_lshl_add_u32 v{T+5}, v{T+1}, 8, v{T+4}\n  v_lshl_add_u32 v{P+1}, v{T+1}, 8, v{P}")
    a(f"  v_lshlrev_b32 v{T+6}, 4, v0")
    a(f"  s_lshl_b32 s38, s2, 12\n  s_lshl_b32 s37, s{sW}, 10\n  s_add_u32 s38, s38, s37")
    a(f"  s_lshl_b32 s39, s{sPair}, 10")
    a("  s_waitcnt lgkmcnt(0)")
    KS, KZ, Q = QP, QP+4, PK
    def dma():
        srd(64, 14, 1 << 20); srd(72, 16, 1 << 20)
        a(f"  s_lshl_b32 s37, s{sW}, 10")
        a(f"  s_add_u32 m0, s37, {LDS_VS}\n  s_nop 0\n  buffer_load_dwordx4 v{T+6}, s[64:67], s38 offen {sflags} lds")
        a(f"  s_add_u32 m0, s37, {LDS_VZ}\n  s_nop 0\n  buffer_load_dwordx4 v{T+6}, s[72:75], s38 offen {sflags} lds")
    srd(24, 10, 1 << 20); srd(28, 12, 1 << 20); srd(sG, 4, 1 << 17)
    a(f"  buffer_load_dwordx2 {r2(KS)}, v{T+5}, s[24:27], s38 offen {sflags}\n  buffer_load_dwordx2 {r2(KS+2)}, v{P+1}, s[24:27], s38 offen {sflags}")
    a(f"  buffer_load_dwordx2 {r2(KZ)}, v{T+5}, s[28:31], s38 offen {sflags}\n  buffer_load_dwordx2 {r2(KZ+2)}, v{P+1}, s[28:31], s38 offen {sflags}")
    QT = O + 24
    if qb:
        a(f"  buffer_load_dwordx2 {r2(QT)}, v{T+5}, s[{sG}:{sG+3}], s39 offen {sflags}\n  buffer_load_dwordx2 {r2(QT+2)}, v{P+1}, s[{sG}:{sG+3}], s39 offen {sflags}")
    else:
        for h in range(4):
            a(f"  buffer_load_dwordx2 {r2(Q+4*h)}, v{T+4}, s[{sG}:{sG+3}], s39 offen offset:{h*256} {sflags}")
            a(f"  buffer_load_dwordx2 {r2(Q+4*h+2)}, v{P}, s[{sG}:{sG+3}], s39 offen offset:{h*256} {sflags}")
    if late != 1: dma()
    srd(sK, 6, 1 << 28); srd(sV, 8, 1 << 28)
    korder = list(range(8)) if kord == 0 else [n for c in range(4) for n in range(8) if 0]
    def issueK(b, t):
        km = kmof(t)
        for n in [2*m+i for m in mord for i in (0, 1)]:
            if n < 2*km: a(f"  buffer_load_dwordx4 {r4(R_(b)+4*n)}, v{vKoff}, s[{sK}:{sK+3}], s{sSo} offen offset:{64*n} {flags}")
            else: a(f"  buffer_load_dwordx4 {r4(R_(b)+4*n)}, v{vKh}, s[{sK}:{sK+3}], s{sSo} offen offset:{(n&1)*512+(n>>1)*128} {flags}")
        a(f"  s_add_u32 s{sSo}, s{sSo}, 32768")
    def issueV(b, t):
        if vxof(t) == 2:
            for n in range(16): a(f"  buffer_load_dwordx2 {r2(R_(b)+2*n)}, v{vVoff}, s[{sV}:{sV+3}], s{sSv} offen offset:{n*128} {flags}")
        else:
            for n in range(8): a(f"  buffer_load_dwordx4 {r4(R_(b)+4*n)}, v{vV4}, s[{sV}:{sV+3}], s{sSv} offen offset:{n*256} {flags}")
        a(f"  s_add_u32 s{sSv}, s{sSv}, 32768")
    for b in range(pre): issueK(b, b)
    srd(sWS, 22, 1 << 21); srd(sOut, 18, 1 << 17)
    W = f"s[{sWS}:{sWS+3}]"
    a(f"  s_lshl_b32 s87, s2, 12\n  s_xor_b32 s88, s87, 4096")
    a(f"  s_and_b32 s89, s{sPair}, 1\n  s_lshl_b32 s89, s89, 4\n  s_lshl_b32 s90, 1, s89\n  s_lshr_b32 s91, s{sPair}, 1\n  s_lshl_b32 s91, s91, 2")
    for m, v in ((92, 0x55555555), (94, 0xaaaaaaaa), (68, 0xf0f0f0f0), (60, 0xff00ff00)): a(f"  s_mov_b32 s{m}, {hex(v)}\n  s_mov_b32 s{m+1}, s{m}")
    a(f"  v_and_b32 v{vC}, 3, v0\n  v_lshlrev_b32 v{vQP}, 6, v{vC}\n  v_lshl_add_u32 v{vQP}, v{T+1}, 4, v{vQP}")
    a(f"  v_lshlrev_b32 v{vC}, 2, v{vC}\n  v_add_u32 v{vC}, {LDS_C}, v{vC}")
    a(f"  s_lshl_b32 s37, s{sW}, 5\n  s_add_u32 s37, s37, {LDS_VS}\n  v_lshl_add_u32 v{vVZ}, v{T+1}, 3, s37\n  v_lshl_add_u32 v{vVS}, v{T+2}, 1, v{vVZ}")
    a(f"  s_lshl_b32 s37, s{sW}, 13\n  s_add_u32 s37, s37, {LDS_X}\n  v_lshl_add_u32 v{vX}, v0, 2, s37")
    a(f"  s_lshl_b32 s37, s{sW}, 2\n  v_add_u32 v{T+7}, s37, v{T+1}")
    a(f"  v_lshlrev_b32 v{T+4}, 10, v{T+7}\n  v_lshl_add_u32 v{T+4}, v{T+2}, 8, v{T+4}\n  v_lshl_add_u32 v{T+4}, v{T+3}, 4, v{T+4}")
    a(f"  v_lshlrev_b32 v{T+5}, 4, v{T+7}\n  v_add_u32 v{T+5}, {LDS_C}, v{T+5}")
    if qb: a(f"  s_lshl_b32 s37, s{sW}, 11\n  s_add_u32 s37, s37, {LDS_O}\n  v_add_u32 v{P}, s37, v{T+6}\n  v_lshl_add_u32 v{P+1}, v{T}, 4, s37")
    a(f"  s_mov_b32 s37, {QSCALE}\n  s_mov_b32 s76, 0xffff0000")
    a(f"  s_waitcnt vmcnt({8*pre})")
    if stamps and midat == 4: a("  s_memrealtime s[84:85]")
    A_, B_, C_ = O, O+8, O+16
    def unpack(dst, src, n):
        for i in range(n):
            a(f"  v_lshlrev_b32 v{dst+2*i}, 16, v{src+i}\n  v_and_b32 v{dst+2*i+1}, s76, v{src+i}")
    n0 = len(L)
    for b in range(pre, D): issueK(b, b)
    pend = "\n".join(L[n0:]).split("\n") if len(L) > n0 else []; del L[n0:]
    def drain(n):
        while pend and (n > 0 or "buffer" not in pend[0]):
            n -= "buffer" in pend[0]; a(pend.pop(0))
    CH = S
    if qb:
        a(f"  ds_write_b128 v{P}, {r4(QT)}")
        for h in range(4): a(f"  ds_read_b128 {r4(Q+4*h)}, v{P+1} offset:{h*256}")
    if dot:
        a("  s_mov_b32 s78, s37")
        unpack(A_, KS, 4)
        for i in range(0, 8, 2): a(f"  v_pk_mul_f32 {r2(A_+i)}, {r2(A_+i)}, s[78:79] op_sel_hi:[1,0]")
    else:
        unpack(A_, KS, 4); unpack(B_, KZ, 4)
        for i in range(8): a(f"  v_mul_f32 v{A_+i}, s37, v{A_+i}")
    for h in range(4):
        drain(ilv)
        if qb and h == 0: a("  s_waitcnt lgkmcnt(0)")
        unpack(C_, Q+4*h, 4)
        if dot:
            for i in range(0, 8, 2): a(f"  v_pk_mul_f32 {r2(C_+i)}, {r2(C_+i)}, {r2(A_+i)}")
        else:
            for i in range(8): a(f"  v_mul_f32 v{C_+i}, v{C_+i}, v{A_+i}")
        for i in range(4): a(f"  v_cvt_pk_bf16_f32 v{Q+4*h+i}, v{C_+2*i}, v{C_+2*i+1}")
        a(f"  ds_write_b128 v{T+4}, {r4(Q+4*h)} offset:{LDS_QP+h*64}")
        if dot:
            for i in range(4): a(f"  v_dot2_f32_bf16 v{CH+h}, v{Q+4*h+i}, v{KZ+i}, {'0' if i == 0 else 'v%d' % (CH+h)}")
        else:
            unpack(C_, Q+4*h, 4)
            a(f"  v_mul_f32 v{CH+h}, v{C_}, v{B_}")
            for i in range(1, 8): a(f"  v_fmac_f32 v{CH+h}, v{C_+i}, v{B_+i}")
    for rr in (8, 4, 2, 1):
        a("  s_nop 2" if rr == 8 else "  s_nop 0")
        for h in range(4): a(f"  v_add_f32_dpp v{CH+h}, v{CH+h}, v{CH+h} row_ror:{rr} row_mask:0xf bank_mask:0xf")
    a(f"  ds_write_b128 v{T+5}, {r4(CH)}")
    drain(99)
    if late == 1: dma()
    a(f"  s_cmp_lg_u32 s{sW}, 0\n  s_cbranch_scc1 L_noclear")
    for i in range(4): a(f"  v_mov_b32 v{Z+i}, -1")
    a(f"  v_lshlrev_b32 v{T+7}, 3, v0")
    a(f"  buffer_store_dwordx4 {r4(Z)}, v{T+6}, {W}, s87 offen sc0 sc1 {cnt}\n  buffer_store_dwordx4 {r4(Z)}, v{T+6}, {W}, s87 offen offset:1024 sc0 sc1 {cnt}")
    a(f"  buffer_store_dwordx2 {r2(Z)}, v{T+7}, {W}, s87 offen offset:2048 sc0 sc1 {cnt}\n  s_nop 1\nL_noclear:")
    for i in range(36): a(f"  v_mov_b32 v{O+i}, 0")
    a(f"  v_mov_b32 v{vM}, 0xff7fffff\n  v_mov_b32 v{vL}, 0")
    a("  s_waitcnt lgkmcnt(0)\n  s_barrier")
    def readQP():
        for m in range(4): a(f"  ds_read_b128 {r4(QP+4*m)}, v{vQP} offset:{LDS_QP+m*256}")
        a(f"  ds_read_b32 v{vCc}, v{vC}")
        a(f"  v_add_u32 v{vQP}, 1024, v{vQP}\n  v_add_u32 v{vC}, 16, v{vC}")
    if stamps and midat == 2: a("  s_memrealtime s[84:85]")
    if stamps and midat == 3: a(f"  s_waitcnt vmcnt({8*(D-1)})\n  s_memrealtime s[84:85]")
    readQP()
    def cvt(r, n):
        for e in range(n): a(f"  v_cvt_f32_i32 v{r+e}, v{r+e}")
    def stepK(b, t, behind, issue, nextgroup):
        k = R_(b); km = kmof(t)
        for mi, m in enumerate(mord):
            a(f"  s_waitcnt vmcnt({behind + 6 - 2*mi})")
            cvt(k+8*m, 8)
            d = PK+4*m if m < km else k+8*m
            for i in range(4): a(f"  v_cvt_pk_bf16_f32 v{d+i}, v{k+8*m+2*i}, v{k+8*m+2*i+1}")
        if km < 4:
            a(f"  s_mov_b64 vcc, {mEven}\n  s_nop 0")
            for m in range(km, 4):
                for e in range(2): a(f"  v_cndmask_b32_dpp v{PK+4*m+e}, v{k+8*m+2+e}, v{k+8*m+e}, vcc quad_perm:[1,0,3,2] row_mask:0xf bank_mask:0xf")
            a(f"  s_mov_b64 vcc, {mOdd}")
            for m in range(km, 4):
                for e in range(2): a(f"  v_cndmask_b32_dpp v{PK+4*m+2+e}, v{k+8*m+e}, v{k+8*m+2+e}, vcc quad_perm:[1,0,3,2] row_mask:0xf bank_mask:0xf")
        if bark and t % bark == 0: a("  s_barrier")
        if issue: issueK(b, t+D)
        else: issueV(b, b)
        a("  s_waitcnt lgkmcnt(0)")
        for m in range(4):
            a(f"  v_mfma_f32_16x16x32_bf16 {r4(S)}, {r4(PK+4*m)}, {r4(QP+4*m)}, {'0' if m == 0 else r4(S)}")
        a("  s_nop 7\n  s_nop 1")
        a(f"  v_cndmask_b32 v{T}, v{S}, v{S+1}, {mB2}\n  v_cndmask_b32 v{T+1}, v{S+2}, v{S+3}, {mB2}\n  v_cndmask_b32 v{T}, v{T}, v{T+1}, {mB3}")
        a(f"  v_sub_f32 v{T}, v{T}, v{vCc}\n  ds_write_b32 v{vX}, v{T} offset:{t*256}\n  v_max_f32 v{vM}, v{vM}, v{T}")
        if nextgroup: readQP()
    U = 4 if kmb != km else D
    a(f"  s_mov_b32 s77, {NSTEP//U-1}\nL_loopK:")
    for t in range(U): stepK(t % D, t, 8*(D-1), True, t & 1)
    a(f"  v_add_u32 v{vX}, {U*256}, v{vX}\n  s_sub_u32 s77, s77, 1\n  s_cmp_lg_u32 s77, 0\n  s_cbranch_scc1 L_loopK")
    for t in range(U):
        tt = max(0, t - (U-D))
        stepK(t % D, t, 8*(D-1-tt) + nvof(0)*tt, t < U-D, (t & 1) and t+1 < U)
    a(f"  v_subrev_u32 v{vX}, {(NSTEP-U)*256}, v{vX}")
    def allreduce(v, op):
        for rr in (4, 8): a(f"  s_nop 1\n  {op}_dpp v{v}, v{v}, v{v} row_ror:{rr} row_mask:0xf bank_mask:0xf")
        for sw in (16, 32): a(f"  v_mov_b32 v{T+7}, v{v}\n  s_nop 1\n  v_permlane{sw}_swap_b32 v{v}, v{T+7}\n  {op} v{v}, v{v}, v{T+7}")
    if stamps and midat == 1: a("  s_memrealtime s[84:85]")
    allreduce(vM, "v_max_f32")
    if late: a("  s_barrier")
    def ldsV(t, x, vs, vz):
        a(f"  ds_read_b32 v{x}, v{vX} offset:{t*256}\n  ds_read_u16 v{vs}, v{vVS} offset:{t*128}\n  ds_read_b64 {r2(vz)}, v{vVZ} offset:{t*128+LDS_VZ-LDS_VS}")
    def soft(x, vs, p):
        a(f"  v_sub_f32 v{x}, v{x}, v{vM}\n  v_exp_f32 v{x}, v{x}\n  v_lshlrev_b32 v{vs}, 16, v{vs}\n  v_mul_f32 v{vs}, v{vs}, v{x}\n  v_add_f32 v{vL}, v{vL}, v{x}\n  s_nop 0")
        a(f"  v_mov_b32_dpp v{x}, v{vs} row_ror:12 row_mask:0xf bank_mask:0xf\n  v_cvt_pk_bf16_f32 v{p}, v{vs}, v{x}\n  s_nop 1")
        a(f"  v_mov_b32_dpp v{p+1}, v{p} row_ror:8 row_mask:0xf bank_mask:0xf")
    PB = QP
    def partner_loads():
        a(f"  buffer_load_dwordx4 {r4(PB)}, v{T+6}, {W}, s88 offen sc0 sc1 {lnt}\n  buffer_load_dwordx4 {r4(PB+4)}, v{T+6}, {W}, s88 offen offset:1024 sc0 sc1 {lnt}")
        a(f"  buffer_load_dwordx2 {r2(PB+8)}, v{T+7}, {W}, s88 offen offset:2048 sc0 sc1 {lnt}")
    def stepV(b, t, g, issue, p, vz, own, last=False):
        v = R_(b); NV = nvof(g); behind = sum(nvof(g+i) for i in range(1, D))
        if own: ldsV(t, T, T+1, vz)
        for s in range(4):
            a(f"  s_waitcnt vmcnt({behind + (3-s)*NV//4})")
            cvt(v+8*s, 8)
            if s & 1:
                for x in range(8): a(f"  v_cvt_pk_bf16_f32 v{PK+2*x+(s>>1)}, v{v+8*(s-1)+x}, v{v+8*s+x}")
            if s == 1 and own:
                a("  s_waitcnt lgkmcnt(0)"); soft(T, T+1, p)
        if last and stamps and midat == 8: a("  s_memrealtime s[84:85]")
        if issue and barv and t % barv == 0: a("  s_barrier")
        if issue: issueV(b, g+D)
        else: a("  s_nop 1")
        if last:
            a(f"  s_cmp_lg_u32 s{sW}, 0\n  s_cbranch_scc1 L_nopf\n  s_waitcnt lgkmcnt(0)")
            a(f"  s_lshr_b32 s90, s90, s89\n  s_and_b32 s90, s90, 0xffff\n  s_cbranch_scc0 L_nopf")
            partner_loads()
            a("L_nopf:")
        a(f"  v_mfma_f32_16x16x16_bf16 {r4(Z)}, {r2(vz)}, {r2(p)}, {r4(Z)}")
        for x in range(8): a(f"  v_mfma_f32_16x16x16_bf16 {r4(O+4*x)}, {r2(PK+2*x)}, {r2(p)}, {r4(O+4*x)}")
    def adv(): a(f"  v_add_u32 v{vX}, {D*256}, v{vX}\n  v_add_u32 v{vVS}, {D*128}, v{vVS}\n  v_add_u32 v{vVZ}, {D*128}, v{vVZ}")
    def loopV(lab, g0, g1):
        n = (g1 - g0)//D
        if n <= 0: return
        if n > 1: a(f"  s_mov_b32 s77, {n}\n{lab}:")
        for t in range(D): stepV(t, t, g0+t, True, P, VZr, True)
        adv()
        if n > 1: a(f"  s_sub_u32 s77, s77, 1\n  s_cmp_lg_u32 s77, 0\n  s_cbranch_scc1 {lab}")
    if 0 < vsw < NSTEP:
        assert vsw % D == 0 and 2*D <= vsw <= NSTEP - D
        a(f"  v_and_b32 v{T}, 15, v0\n  v_lshl_add_u32 v{vV4}, v{T}, 3, v{vVoff}")
        loopV("L_loopV", 0, vsw - D)
        loopV("L_sw", vsw - D, vsw)
        a(f"  v_and_b32 v{T}, 15, v0\n  v_lshrrev_b32 v{T+1}, 4, v0\n  s_lshl_b32 s37, s{sW}, 11\n  s_add_u32 s37, s37, {LDS_O}")
        a(f"  v_cmp_gt_u32 s[62:63], 4, v{T}\n  v_lshl_add_u32 v{T+2}, v{T}, 9, s37\n  v_lshl_add_u32 v{T+3}, v{T+1}, 6, v{T+2}\n  v_lshl_add_u32 v{T+2}, v{T+1}, 5, v{T+2}")
        a("  s_nop 2\n  s_mov_b64 exec, s[62:63]")
        for x in range(8):
            for r in range(4): a(f"  ds_write_b32 v{T+2}, v{O+4*x+r} offset:{(x>>1)*128 + (2*r + (x&1))*4}")
        for x in range(8):
            for r in range(4): a(f"  ds_read_b32 v{O+4*x+r}, v{T+3} offset:{(x>>2)*256 + (4*r + (x&3))*4}")
        a("  s_mov_b64 exec, -1")
        loopV("L_loopW", vsw, NSTEP - D)
    else:
        loopV("L_loopV", 0, NSTEP - D)
    assert D <= 4
    XS = T
    for t in range(D): ldsV(t, XS+2*t, XS+2*t+1, QP+8+2*t if t < 1 or True else 0)
    a("  s_waitcnt lgkmcnt(0)")
    PT = [S, S+2, P, VZr]
    for t in range(D): soft(XS+2*t, XS+2*t+1, PT[t])
    allreduce(vL, "v_add_f32")
    a(f"  v_and_b32 v{T}, 15, v0\n  v_lshrrev_b32 v{T+1}, 4, v0\n  s_lshl_b32 s37, s{sW}, 5\n  s_add_u32 s37, s37, {LDS_ML}\n  v_lshl_add_u32 v{T+3}, v{T}, 3, s37")
    a(f"  s_lshl_b32 s37, s{sW}, 11\n  s_add_u32 s37, s37, {LDS_O}")
    a(f"  v_lshlrev_b32 v{T+2}, 9, v{T}\n  v_lshl_add_u32 v{T+2}, v{T+1}, {5 if vsw == 32 else 6}, v{T+2}\n  v_add_u32 v{T+2}, s37, v{T+2}")
    a(f"  v_cmp_gt_u32 s[62:63], 4, v{T}\n  v_lshlrev_b32 v{T+6}, 4, v0\n  v_lshlrev_b32 v{T+7}, 3, v0")
    a(f"  s_mov_b64 exec, s[62:63]\n  ds_write_b64 v{T+3}, {r2(vM)}\n  s_mov_b64 exec, -1")
    a(f"  v_lshlrev_b32 v{T+4}, 5, v0\n  v_lshlrev_b32 v{T+5}, 3, v{T+1}")
    for t in range(D):
        if NSTEP - D + t == max(tk, NSTEP - D):
            a(f"  s_cmp_lg_u32 s{sW}, 0\n  s_cbranch_scc1 L_noticket\n  s_atomic_add s90, s[20:21], s91 glc\nL_noticket:")
        stepV(t, t, NSTEP-D+t, False, PT[t], QP+8+2*t, False, last=(t == D-1))
    if stamps and midat == 0: a("  s_memrealtime s[84:85]")
    R = R_(0)
    a("  s_nop 7\n  s_mov_b64 exec, s[62:63]")
    if vsw == 32:
        for c in range(4):
            for r in range(4):
                for e in range(2): a(f"  v_sub_f32 v{R+8*c+2*r+e}, v{O+4*(2*c+e)+r}, v{Z}")
            a(f"  ds_write_b128 v{T+2}, {r4(R+8*c)} offset:{c*128}\n  ds_write_b128 v{T+2}, {r4(R+8*c+4)} offset:{c*128+16}")
    else:
        for hf in range(2):
            for r in range(4):
                for e in range(4): a(f"  v_sub_f32 v{R+16*hf+4*r+e}, v{O+16*hf+4*e+r}, v{Z}")
                a(f"  ds_write_b128 v{T+2}, {r4(R+16*hf+4*r)} offset:{hf*256+r*16}")
    a("  s_mov_b64 exec, -1\n  s_waitcnt lgkmcnt(0)\n  s_barrier")
    a(f"  s_cmp_lg_u32 s{sW}, 0\n  s_cbranch_scc1 L_end")
    if stamps and midat == 5: a("  s_memrealtime s[84:85]")
    ML = PK
    for w in range(4): a(f"  ds_read_b64 {r2(ML+2*w)}, v{T+5} offset:{LDS_ML+w*32}")
    for w in range(4): a(f"  ds_read_b128 {r4(R+8*w)}, v{T+4} offset:{LDS_O+w*2048}\n  ds_read_b128 {r4(R+8*w+4)}, v{T+4} offset:{LDS_O+w*2048+16}")
    a("  s_waitcnt lgkmcnt(8)")
    a(f"  v_max3_f32 v{vM}, v{ML}, v{ML+2}, v{ML+4}\n  v_max_f32 v{vM}, v{vM}, v{ML+6}")
    for w in range(4): a(f"  v_sub_f32 v{ML+2*w}, v{ML+2*w}, v{vM}")
    for w in range(4): a(f"  v_exp_f32 v{ML+2*w}, v{ML+2*w}")
    a(f"  s_nop 0\n  v_mul_f32 v{vL}, v{ML}, v{ML+1}")
    for w in range(1, 4): a(f"  v_fmac_f32 v{vL}, v{ML+2*w}, v{ML+2*w+1}")
    a("  s_waitcnt lgkmcnt(0)")
    if pk:
        for i in range(0, 8, 2): a(f"  v_pk_mul_f32 {r2(O+i)}, {r2(R+i)}, {r2(ML)} op_sel_hi:[1,0]")
        for w in range(1, 4):
            for i in range(0, 8, 2): a(f"  v_pk_fma_f32 {r2(O+i)}, {r2(R+8*w+i)}, {r2(ML+2*w)}, {r2(O+i)} op_sel_hi:[1,0,1]")
    else:
        for i in range(8): a(f"  v_mul_f32 v{O+i}, v{ML}, v{R+i}")
        for w in range(1, 4):
            for i in range(8): a(f"  v_fmac_f32 v{O+i}, v{ML+2*w}, v{R+8*w+i}")
    if stamps and midat == 6: a("  s_memrealtime s[84:85]")
    a("  s_cmp_lg_u32 s90, 0\n  s_cbranch_scc1 L_second")
    a(f"  buffer_store_dwordx4 {r4(O)}, v{T+6}, {W}, s87 offen sc0 sc1 {pnt}\n  buffer_store_dwordx4 {r4(O+4)}, v{T+6}, {W}, s87 offen offset:1024 sc0 sc1 {pnt}")
    a(f"  buffer_store_dwordx2 {r2(vM)}, v{T+7}, {W}, s87 offen offset:2048 sc0 sc1 {pnt}")
    a("  s_branch L_fin\nL_repoll:")
    partner_loads()
    a("L_second:\n  s_waitcnt vmcnt(0)")
    a(f"  v_max3_u32 v{T}, v{PB}, v{PB+1}, v{PB+2}")
    for i in (3, 5, 7): a(f"  v_max3_u32 v{T}, v{T}, v{PB+i}, v{PB+i+1}")
    a(f"  v_max_u32 v{T}, v{T}, v{PB+9}\n  v_cmp_eq_u32 vcc, -1, v{T}\n  s_cbranch_vccnz L_repoll")
    a(f"  v_max_f32 v{T}, v{vM}, v{PB+8}\n  v_sub_f32 v{T+1}, v{vM}, v{T}\n  v_sub_f32 v{T+2}, v{PB+8}, v{T}")
    a(f"  v_exp_f32 v{T+1}, v{T+1}\n  v_exp_f32 v{T+2}, v{T+2}\n  s_nop 0")
    a(f"  v_mul_f32 v{T+3}, v{T+1}, v{vL}\n  v_fmac_f32 v{T+3}, v{T+2}, v{PB+9}\n  v_rcp_f32 v{T+3}, v{T+3}\n  s_nop 0")
    if pk:
        a(f"  v_mul_f32 v{T}, v{T+1}, v{T+3}\n  v_mul_f32 v{T+2}, v{T+2}, v{T+3}")
        for i in range(0, 8, 2): a(f"  v_pk_mul_f32 {r2(O+i)}, {r2(O+i)}, {r2(T)} op_sel_hi:[1,0]")
        for i in range(0, 8, 2): a(f"  v_pk_fma_f32 {r2(O+i)}, {r2(PB+i)}, {r2(T+2)}, {r2(O+i)} op_sel_hi:[1,0,1]")
    else:
        a(f"  v_mul_f32 v{T+1}, v{T+1}, v{T+3}\n  v_mul_f32 v{T+2}, v{T+2}, v{T+3}")
        for i in range(8): a(f"  v_mul_f32 v{O+i}, v{O+i}, v{T+1}")
        for i in range(8): a(f"  v_fmac_f32 v{O+i}, v{PB+i}, v{T+2}")
    for i in range(4): a(f"  v_cvt_pk_bf16_f32 v{O+8+i}, v{O+2*i}, v{O+2*i+1}")
    a(f"  buffer_store_dwordx4 {r4(O+8)}, v{T+6}, s[{sOut}:{sOut+3}], s39 offen {oflags}")
    a("L_fin:")
    if stamps and midat == 7: a("  s_memrealtime s[84:85]")
    if stamps:
        a("  s_waitcnt vmcnt(0)\n  s_memrealtime s[80:81]\n  s_getreg_b32 s82, hwreg(HW_REG_XCC_ID)\n  s_waitcnt lgkmcnt(0)")
        a(f"  s_lshl_b32 s32, s83, 4\n  s_add_u32 s32, s32, 0x100000\n  v_mov_b32 v{O}, s70\n  v_mov_b32 v{O+1}, s80\n  v_mov_b32 v{O+2}, s82\n  v_mov_b32 v{O+3}, s84")
        a(f"  s_mov_b64 exec, 1\n  buffer_store_dwordx4 {r4(O)}, off, {W}, s32")
    a("L_end:\n  s_endpgm")
    a('.section .rodata,"a"\n.p2align 6')
    a(f".amdhsa_kernel {name}\n  .amdhsa_next_free_vgpr {nv}\n  .amdhsa_next_free_sgpr 96\n  .amdhsa_accum_offset {min(256,(nv+3)//4*4)}\n  .amdhsa_group_segment_fixed_size 0\n  .amdhsa_kernarg_size 80\n  .amdhsa_user_sgpr_count 2\n  .amdhsa_user_sgpr_kernarg_segment_ptr 1\n  .amdhsa_system_sgpr_workgroup_id_x 1\n.end_amdhsa_kernel")
    return "\n".join(L) + "\n"
if __name__ == "__main__":
    kw = json.loads(sys.argv[2]) if len(sys.argv) > 2 else {}
    open(sys.argv[1], "w").write(gen(**kw))
```

```python
import struct, sys, json
KNAME = "standalone__kv_cache_quant_int4_int2_kv_with_per_channel_or_per_token_scales__sampling_kernel"
HEADER = open("standalone__kv_cache_quant_int4_int2_kv_with_per_channel_or_per_token_scales__sampling.s.ref").read().split("; Override launch")[0]
def f32(x): return "0x%08x" % struct.unpack("<I", struct.pack("<f", x))[0]
QSCALE = f32((128.0 ** -0.5) * 1.4426950408889634)
LDS_QP, LDS_C, LDS_VS, LDS_VZ, LDS_O, LDS_ML, LDS_X = 0, 0x4000, 0x4400, 0x5400, 0x6400, 0x8400, 0x8800

def gen(name=KNAME, D=4, lds=90112, flags="nt", stamps=False, sflags='nt', km=2, pre=2, tk=29, oflags='', vx=2, late=0, kord=0, midat=0, pm=4, kmb=None, hfirst=0, ilv=0, dot=0, vsw=32, pk=0, bark=0, barv=0, cnt='', pnt='', lnt='', qb=0, kf=0, sp=0):
    assert not sp or (D == 2 and kmb in (None, km))
    assert not qb or kmb in (None, km)
    mord = [[0,1,2,3], [3,2,1,0], [2,3,0,1], [2,0,3,1], [3,2,0,1], [0,2,1,3]][hfirst]
    if vx == 4: vsw = 0
    def vxof(t): return 2 if t < vsw else 4
    def nvof(t): return 0 if t >= 32 else (16 if t < vsw else 8)
    if kmb is None: kmb = km
    def kmof(t): return kmb if (t >> 1) & 1 else km
    NSTEP = 32
    L = []; a = L.append
    a(HEADER.rstrip())
    a(f"; @launch grid=(256,1,1) block=(256,1,1) lds={lds}")
    a('.amdgcn_target "amdgcn-amd-amdhsa--gfx950"\n.text')
    a(f".globl {name}\n.p2align 8\n.type {name},@function\n{name}:")
    vKoff, vVoff, vQP, vC, vVS = 1, 2, 3, 4, 5
    vM, vL, vCc, vKh = 6, 7, 8, 9
    S = 10; P = 14; VZr = 16; vVZ = 18; vX = 19; T = 20
    QP = 28; PK = 44; O = 60; Z = 92; RAW = 96
    def R_(b): return RAW + 32*b
    nv = RAW + 32*(D + sp)
    vV4 = vVoff if vsw == 0 else vC
    def r4(x): return f"v[{x}:{x+3}]"
    def r2(x): return f"v[{x}:{x+1}]"
    sK, sV, sG, sWS, sOut = 40, 44, 48, 52, 56
    sPair, sHalf, sSo, sSv, sW = 33, 34, 36, 32, 3
    mEven, mOdd, mB2, mB3 = "s[92:93]", "s[94:95]", "s[68:69]", "s[60:61]"
    def srd(d, lo, n):
        a(f"  s_mov_b32 s{d}, s{lo}\n  s_and_b32 s{d+1}, s{lo+1}, 0xffff\n  s_mov_b32 s{d+2}, {n}\n  s_mov_b32 s{d+3}, 0x20000")
    a("  s_cmp_ge_u32 s2, 256\n  s_cbranch_scc1 L_end")
    if stamps: a("  s_memrealtime s[70:71]")
    a("  s_load_dwordx16 s[4:19], s[0:1], 0\n  s_load_dwordx4 s[20:23], s[0:1], 64")
    a("  v_lshrrev_b32 v1, 6, v0\n  v_and_b32 v0, 63, v0")
    if stamps: a("  s_mov_b32 s83, s2")
    if pm > 1:
        lg = pm.bit_length() - 1
        a(f"  s_and_b32 s33, s2, {pm-1}\n  s_lshl_b32 s33, s33, 1\n  s_bfe_u32 s34, s2, {hex(0x10000 | lg)}\n  s_or_b32 s33, s33, s34\n  s_andn2_b32 s2, s2, {2*pm-1}\n  s_or_b32 s2, s2, s33")
    a(f"  s_lshr_b32 s{sPair}, s2, 1")
    a(f"  v_readfirstlane_b32 s{sW}, v1")
    a(f"  v_and_b32 v{T}, 15, v0\n  v_lshrrev_b32 v{T+1}, 4, v0")
    a(f"  v_lshlrev_b32 v{vKoff}, 9, v{T}\n  v_lshl_add_u32 v{vKoff}, v{T+1}, 4, v{vKoff}")
    a(f"  v_and_b32 v{T+2}, 14, v0\n  v_lshlrev_b32 v{vKh}, 9, v{T+2}\n  v_lshl_add_u32 v{vKh}, v{T+1}, 5, v{vKh}\n  v_and_b32 v{T+2}, 1, v0\n  v_lshl_add_u32 v{vKh}, v{T+2}, 4, v{vKh}")
    a(f"  v_lshlrev_b32 v{vVoff}, {3 if vsw else 4}, v{T}\n  v_lshl_add_u32 v{vVoff}, v{T+1}, 11, v{vVoff}")
    a(f"  s_lshl_b32 s{sSo}, s2, 20\n  s_lshl_b32 s37, s{sW}, 13\n  s_add_u32 s{sSo}, s{sSo}, s37\n  s_mov_b32 s{sSv}, s{sSo}")
    a(f"  v_lshrrev_b32 v{T+2}, 2, v{T}\n  v_and_b32 v{T+3}, 3, v{T}")
    a(f"  v_and_b32 v{T+4}, 1, v{T+1}\n  v_mad_i32_i24 v{T+4}, v{T+4}, {kmb-km}, {km}")
    a(f"  v_cmp_gt_u32 vcc, v{T+4}, v{T+2}\n  v_lshlrev_b32 v{T+4}, 4, v{T+3}\n  v_lshlrev_b32 v{T+5}, 3, v{T+3}\n  v_cndmask_b32 v{T+4}, v{T+4}, v{T+5}, vcc")
    a(f"  v_lshl_add_u32 v{T+4}, v{T+2}, 6, v{T+4}")
    a(f"  v_cndmask_b32 v{P}, 8, 32, vcc\n  v_add_u32 v{P}, v{P}, v{T+4}")
    a(f"  v_lshl_add_u32 v{T+5}, v{T+1}, 8, v{T+4}\n  v_lshl_add_u32 v{P+1}, v{T+1}, 8, v{P}")
    a(f"  v_lshlrev_b32 v{T+6}, 4, v0")
    a(f"  s_lshl_b32 s38, s2, 12\n  s_lshl_b32 s37, s{sW}, 10\n  s_add_u32 s38, s38, s37")
    a(f"  s_lshl_b32 s39, s{sPair}, 10")
    a("  s_waitcnt lgkmcnt(0)")
    KS, KZ, Q = QP, QP+4, PK
    def dma():
        srd(64, 14, 1 << 20); srd(72, 16, 1 << 20)
        a(f"  s_lshl_b32 s37, s{sW}, 10")
        a(f"  s_add_u32 m0, s37, {LDS_VS}\n  s_nop 0\n  buffer_load_dwordx4 v{T+6}, s[64:67], s38 offen {sflags} lds")
        a(f"  s_add_u32 m0, s37, {LDS_VZ}\n  s_nop 0\n  buffer_load_dwordx4 v{T+6}, s[72:75], s38 offen {sflags} lds")
    korder = list(range(8)) if kord == 0 else [n for c in range(4) for n in range(8) if 0]
    def issueK(b, t):
        km = kmof(t)
        for n in [2*m+i for m in mord for i in (0, 1)]:
            if n < 2*km: a(f"  buffer_load_dwordx4 {r4(R_(b)+4*n)}, v{vKoff}, s[{sK}:{sK+3}], s{sSo} offen offset:{64*n} {flags}")
            else: a(f"  buffer_load_dwordx4 {r4(R_(b)+4*n)}, v{vKh}, s[{sK}:{sK+3}], s{sSo} offen offset:{(n&1)*512+(n>>1)*128} {flags}")
        a(f"  s_add_u32 s{sSo}, s{sSo}, 32768")
    def issueV(b, t):
        if vxof(t) == 2:
            for n in range(16): a(f"  buffer_load_dwordx2 {r2(R_(b)+2*n)}, v{vVoff}, s[{sV}:{sV+3}], s{sSv} offen offset:{n*128} {flags}")
        else:
            for n in range(8): a(f"  buffer_load_dwordx4 {r4(R_(b)+4*n)}, v{vV4}, s[{sV}:{sV+3}], s{sSv} offen offset:{n*256} {flags}")
        a(f"  s_add_u32 s{sSv}, s{sSv}, 32768")
    if kf:
        srd(sK, 6, 1 << 28)
        for b in range(kf): issueK(b, b)
    srd(24, 10, 1 << 20); srd(28, 12, 1 << 20); srd(sG, 4, 1 << 17)
    a(f"  buffer_load_dwordx2 {r2(KS)}, v{T+5}, s[24:27], s38 offen {sflags}\n  buffer_load_dwordx2 {r2(KS+2)}, v{P+1}, s[24:27], s38 offen {sflags}")
    a(f"  buffer_load_dwordx2 {r2(KZ)}, v{T+5}, s[28:31], s38 offen {sflags}\n  buffer_load_dwordx2 {r2(KZ+2)}, v{P+1}, s[28:31], s38 offen {sflags}")
    QT = O + 24
    if qb:
        a(f"  buffer_load_dwordx2 {r2(QT)}, v{T+5}, s[{sG}:{sG+3}], s39 offen {sflags}\n  buffer_load_dwordx2 {r2(QT+2)}, v{P+1}, s[{sG}:{sG+3}], s39 offen {sflags}")
    else:
        for h in range(4):
            a(f"  buffer_load_dwordx2 {r2(Q+4*h)}, v{T+4}, s[{sG}:{sG+3}], s39 offen offset:{h*256} {sflags}")
            a(f"  buffer_load_dwordx2 {r2(Q+4*h+2)}, v{P}, s[{sG}:{sG+3}], s39 offen offset:{h*256} {sflags}")
    if late != 1: dma()
    if not kf: srd(sK, 6, 1 << 28); srd(sV, 8, 1 << 28)
    for b in range(kf, pre): issueK(b, b)
    if kf: srd(sV, 8, 1 << 28)
    srd(sWS, 22, 1 << 21); srd(sOut, 18, 1 << 17)
    W = f"s[{sWS}:{sWS+3}]"
    a(f"  s_lshl_b32 s87, s2, 12\n  s_xor_b32 s88, s87, 4096")
    a(f"  s_and_b32 s89, s{sPair}, 1\n  s_lshl_b32 s89, s89, 4\n  s_lshl_b32 s90, 1, s89\n  s_lshr_b32 s91, s{sPair}, 1\n  s_lshl_b32 s91, s91, 2")
    for m, v in ((92, 0x55555555), (94, 0xaaaaaaaa), (68, 0xf0f0f0f0), (60, 0xff00ff00)): a(f"  s_mov_b32 s{m}, {hex(v)}\n  s_mov_b32 s{m+1}, s{m}")
    a(f"  v_and_b32 v{vC}, 3, v0\n  v_lshlrev_b32 v{vQP}, 6, v{vC}\n  v_lshl_add_u32 v{vQP}, v{T+1}, 4, v{vQP}")
    a(f"  v_lshlrev_b32 v{vC}, 2, v{vC}\n  v_add_u32 v{vC}, {LDS_C}, v{vC}")
    a(f"  s_lshl_b32 s37, s{sW}, 5\n  s_add_u32 s37, s37, {LDS_VS}\n  v_lshl_add_u32 v{vVZ}, v{T+1}, 3, s37\n  v_lshl_add_u32 v{vVS}, v{T+2}, 1, v{vVZ}")
    a(f"  s_lshl_b32 s37, s{sW}, 13\n  s_add_u32 s37, s37, {LDS_X}\n  v_lshl_add_u32 v{vX}, v0, 2, s37")
    a(f"  s_lshl_b32 s37, s{sW}, 2\n  v_add_u32 v{T+7}, s37, v{T+1}")
    a(f"  v_lshlrev_b32 v{T+4}, 10, v{T+7}\n  v_lshl_add_u32 v{T+4}, v{T+2}, 8, v{T+4}\n  v_lshl_add_u32 v{T+4}, v{T+3}, 4, v{T+4}")
    a(f"  v_lshlrev_b32 v{T+5}, 4, v{T+7}\n  v_add_u32 v{T+5}, {LDS_C}, v{T+5}")
    if qb: a(f"  s_lshl_b32 s37, s{sW}, 11\n  s_add_u32 s37, s37, {LDS_O}\n  v_add_u32 v{P}, s37, v{T+6}\n  v_lshl_add_u32 v{P+1}, v{T}, 4, s37")
    a(f"  s_mov_b32 s37, {QSCALE}\n  s_mov_b32 s76, 0xffff0000")
    a(f"  s_waitcnt vmcnt({8*(pre-kf)})")
    if stamps and midat == 4: a("  s_memrealtime s[84:85]")
    A_, B_, C_ = O, O+8, O+16
    def unpack(dst, src, n):
        for i in range(n):
            a(f"  v_lshlrev_b32 v{dst+2*i}, 16, v{src+i}\n  v_and_b32 v{dst+2*i+1}, s76, v{src+i}")
    n0 = len(L)
    for b in range(pre, D + sp): issueK(b, b)
    pend = "\n".join(L[n0:]).split("\n") if len(L) > n0 else []; del L[n0:]
    def drain(n):
        while pend and (n > 0 or "buffer" not in pend[0]):
            n -= "buffer" in pend[0]; a(pend.pop(0))
    CH = S
    if qb:
        a(f"  ds_write_b128 v{P}, {r4(QT)}")
        for h in range(4): a(f"  ds_read_b128 {r4(Q+4*h)}, v{P+1} offset:{h*256}")
    if dot:
        a("  s_mov_b32 s78, s37")
        unpack(A_, KS, 4)
        for i in range(0, 8, 2): a(f"  v_pk_mul_f32 {r2(A_+i)}, {r2(A_+i)}, s[78:79] op_sel_hi:[1,0]")
    else:
        unpack(A_, KS, 4); unpack(B_, KZ, 4)
        for i in range(8): a(f"  v_mul_f32 v{A_+i}, s37, v{A_+i}")
    for h in range(4):
        drain(ilv)
        if qb and h == 0: a("  s_waitcnt lgkmcnt(0)")
        unpack(C_, Q+4*h, 4)
        if dot:
            for i in range(0, 8, 2): a(f"  v_pk_mul_f32 {r2(C_+i)}, {r2(C_+i)}, {r2(A_+i)}")
        else:
            for i in range(8): a(f"  v_mul_f32 v{C_+i}, v{C_+i}, v{A_+i}")
        for i in range(4): a(f"  v_cvt_pk_bf16_f32 v{Q+4*h+i}, v{C_+2*i}, v{C_+2*i+1}")
        a(f"  ds_write_b128 v{T+4}, {r4(Q+4*h)} offset:{LDS_QP+h*64}")
        if dot:
            for i in range(4): a(f"  v_dot2_f32_bf16 v{CH+h}, v{Q+4*h+i}, v{KZ+i}, {'0' if i == 0 else 'v%d' % (CH+h)}")
        else:
            unpack(C_, Q+4*h, 4)
            a(f"  v_mul_f32 v{CH+h}, v{C_}, v{B_}")
            for i in range(1, 8): a(f"  v_fmac_f32 v{CH+h}, v{C_+i}, v{B_+i}")
    for rr in (8, 4, 2, 1):
        a("  s_nop 2" if rr == 8 else "  s_nop 0")
        for h in range(4): a(f"  v_add_f32_dpp v{CH+h}, v{CH+h}, v{CH+h} row_ror:{rr} row_mask:0xf bank_mask:0xf")
    a(f"  ds_write_b128 v{T+5}, {r4(CH)}")
    drain(99)
    if late == 1: dma()
    a(f"  s_cmp_lg_u32 s{sW}, 0\n  s_cbranch_scc1 L_noclear")
    for i in range(4): a(f"  v_mov_b32 v{Z+i}, -1")
    a(f"  v_lshlrev_b32 v{T+7}, 3, v0")
    a(f"  buffer_store_dwordx4 {r4(Z)}, v{T+6}, {W}, s87 offen sc0 sc1 {cnt}\n  buffer_store_dwordx4 {r4(Z)}, v{T+6}, {W}, s87 offen offset:1024 sc0 sc1 {cnt}")
    a(f"  buffer_store_dwordx2 {r2(Z)}, v{T+7}, {W}, s87 offen offset:2048 sc0 sc1 {cnt}\n  s_nop 1\nL_noclear:")
    for i in range(36): a(f"  v_mov_b32 v{O+i}, 0")
    a(f"  v_mov_b32 v{vM}, 0xff7fffff\n  v_mov_b32 v{vL}, 0")
    a("  s_waitcnt lgkmcnt(0)\n  s_barrier")
    def readQP():
        for m in range(4): a(f"  ds_read_b128 {r4(QP+4*m)}, v{vQP} offset:{LDS_QP+m*256}")
        a(f"  ds_read_b32 v{vCc}, v{vC}")
        a(f"  v_add_u32 v{vQP}, 1024, v{vQP}\n  v_add_u32 v{vC}, 16, v{vC}")
    if stamps and midat == 2: a("  s_memrealtime s[84:85]")
    if stamps and midat == 3: a(f"  s_waitcnt vmcnt({8*(D-1)})\n  s_memrealtime s[84:85]")
    readQP()
    def cvt(r, n):
        for e in range(n): a(f"  v_cvt_f32_i32 v{r+e}, v{r+e}")
    def stepK(b, t, behind, issue, nextgroup, ib=None):
        k = R_(b); km = kmof(t)
        for mi, m in enumerate(mord):
            a(f"  s_waitcnt vmcnt({behind + 6 - 2*mi})")
            cvt(k+8*m, 8)
            d = PK+4*m if m < km else k+8*m
            for i in range(4): a(f"  v_cvt_pk_bf16_f32 v{d+i}, v{k+8*m+2*i}, v{k+8*m+2*i+1}")
        if km < 4:
            a(f"  s_mov_b64 vcc, {mEven}\n  s_nop 0")
            for m in range(km, 4):
                for e in range(2): a(f"  v_cndmask_b32_dpp v{PK+4*m+e}, v{k+8*m+2+e}, v{k+8*m+e}, vcc quad_perm:[1,0,3,2] row_mask:0xf bank_mask:0xf")
            a(f"  s_mov_b64 vcc, {mOdd}")
            for m in range(km, 4):
                for e in range(2): a(f"  v_cndmask_b32_dpp v{PK+4*m+2+e}, v{k+8*m+e}, v{k+8*m+2+e}, vcc quad_perm:[1,0,3,2] row_mask:0xf bank_mask:0xf")
        if bark and t % bark == 0: a("  s_barrier")
        if issue == 'none': a('  s_nop 1')
        elif issue: issueK(b if ib is None else ib, t+D)
        else: issueV(b, b)
        a("  s_waitcnt lgkmcnt(0)")
        for m in range(4):
            a(f"  v_mfma_f32_16x16x32_bf16 {r4(S)}, {r4(PK+4*m)}, {r4(QP+4*m)}, {'0' if m == 0 else r4(S)}")
        a("  s_nop 7\n  s_nop 1")
        a(f"  v_cndmask_b32 v{T}, v{S}, v{S+1}, {mB2}\n  v_cndmask_b32 v{T+1}, v{S+2}, v{S+3}, {mB2}\n  v_cndmask_b32 v{T}, v{T}, v{T+1}, {mB3}")
        a(f"  v_sub_f32 v{T}, v{T}, v{vCc}\n  ds_write_b32 v{vX}, v{T} offset:{t*256}\n  v_max_f32 v{vM}, v{vM}, v{T}")
        if nextgroup: readQP()
    U = 4 if kmb != km else D
    if sp:
        stepK(0, 0, 16, 'none', 0); stepK(1, 1, 8, True, 1); stepK(2, 2, 8, True, 0, ib=0); stepK(1, 3, 8, True, 1)
        a(f"  v_add_u32 v{vX}, 1024, v{vX}")
    a(f"  s_mov_b32 s77, {NSTEP//U-1-2*sp}\nL_loopK:")
    for t in range(U): stepK(t % D, t, 8*(D-1), True, t & 1)
    a(f"  v_add_u32 v{vX}, {U*256}, v{vX}\n  s_sub_u32 s77, s77, 1\n  s_cmp_lg_u32 s77, 0\n  s_cbranch_scc1 L_loopK")
    for t in range(U):
        tt = max(0, t - (U-D))
        stepK(t % D, t, 8*(D-1-tt) + nvof(0)*tt, t < U-D, (t & 1) and t+1 < U)
    a(f"  v_subrev_u32 v{vX}, {(NSTEP-U)*256}, v{vX}")
    def allreduce(v, op):
        for rr in (4, 8): a(f"  s_nop 1\n  {op}_dpp v{v}, v{v}, v{v} row_ror:{rr} row_mask:0xf bank_mask:0xf")
        for sw in (16, 32): a(f"  v_mov_b32 v{T+7}, v{v}\n  s_nop 1\n  v_permlane{sw}_swap_b32 v{v}, v{T+7}\n  {op} v{v}, v{v}, v{T+7}")
    if stamps and midat == 1: a("  s_memrealtime s[84:85]")
    allreduce(vM, "v_max_f32")
    if late: a("  s_barrier")
    def ldsV(t, x, vs, vz):
        a(f"  ds_read_b32 v{x}, v{vX} offset:{t*256}\n  ds_read_u16 v{vs}, v{vVS} offset:{t*128}\n  ds_read_b64 {r2(vz)}, v{vVZ} offset:{t*128+LDS_VZ-LDS_VS}")
    def soft(x, vs, p):
        a(f"  v_sub_f32 v{x}, v{x}, v{vM}\n  v_exp_f32 v{x}, v{x}\n  v_lshlrev_b32 v{vs}, 16, v{vs}\n  v_mul_f32 v{vs}, v{vs}, v{x}\n  v_add_f32 v{vL}, v{vL}, v{x}\n  s_nop 0")
        a(f"  v_mov_b32_dpp v{x}, v{vs} row_ror:12 row_mask:0xf bank_mask:0xf\n  v_cvt_pk_bf16_f32 v{p}, v{vs}, v{x}\n  s_nop 1")
        a(f"  v_mov_b32_dpp v{p+1}, v{p} row_ror:8 row_mask:0xf bank_mask:0xf")
    PB = QP
    def partner_loads():
        a(f"  buffer_load_dwordx4 {r4(PB)}, v{T+6}, {W}, s88 offen sc0 sc1 {lnt}\n  buffer_load_dwordx4 {r4(PB+4)}, v{T+6}, {W}, s88 offen offset:1024 sc0 sc1 {lnt}")
        a(f"  buffer_load_dwordx2 {r2(PB+8)}, v{T+7}, {W}, s88 offen offset:2048 sc0 sc1 {lnt}")
    def stepV(b, t, g, issue, p, vz, own, last=False):
        v = R_(b); NV = nvof(g); behind = sum(nvof(g+i) for i in range(1, D))
        if own: ldsV(t, T, T+1, vz)
        for s in range(4):
            a(f"  s_waitcnt vmcnt({behind + (3-s)*NV//4})")
            cvt(v+8*s, 8)
            if s & 1:
                for x in range(8): a(f"  v_cvt_pk_bf16_f32 v{PK+2*x+(s>>1)}, v{v+8*(s-1)+x}, v{v+8*s+x}")
            if s == 1 and own:
                a("  s_waitcnt lgkmcnt(0)"); soft(T, T+1, p)
        if last and stamps and midat == 8: a("  s_memrealtime s[84:85]")
        if issue and barv and t % barv == 0: a("  s_barrier")
        if issue: issueV(b, g+D)
        else: a("  s_nop 1")
        if last:
            a(f"  s_cmp_lg_u32 s{sW}, 0\n  s_cbranch_scc1 L_nopf\n  s_waitcnt lgkmcnt(0)")
            a(f"  s_lshr_b32 s90, s90, s89\n  s_and_b32 s90, s90, 0xffff\n  s_cbranch_scc0 L_nopf")
            partner_loads()
            a("L_nopf:")
        a(f"  v_mfma_f32_16x16x16_bf16 {r4(Z)}, {r2(vz)}, {r2(p)}, {r4(Z)}")
        for x in range(8): a(f"  v_mfma_f32_16x16x16_bf16 {r4(O+4*x)}, {r2(PK+2*x)}, {r2(p)}, {r4(O+4*x)}")
    def adv(): a(f"  v_add_u32 v{vX}, {D*256}, v{vX}\n  v_add_u32 v{vVS}, {D*128}, v{vVS}\n  v_add_u32 v{vVZ}, {D*128}, v{vVZ}")
    def loopV(lab, g0, g1):
        n = (g1 - g0)//D
        if n <= 0: return
        if n > 1: a(f"  s_mov_b32 s77, {n}\n{lab}:")
        for t in range(D): stepV(t, t, g0+t, True, P, VZr, True)
        adv()
        if n > 1: a(f"  s_sub_u32 s77, s77, 1\n  s_cmp_lg_u32 s77, 0\n  s_cbranch_scc1 {lab}")
    if 0 < vsw < NSTEP:
        assert vsw % D == 0 and 2*D <= vsw <= NSTEP - D
        a(f"  v_and_b32 v{T}, 15, v0\n  v_lshl_add_u32 v{vV4}, v{T}, 3, v{vVoff}")
        loopV("L_loopV", 0, vsw - D)
        loopV("L_sw", vsw - D, vsw)
        a(f"  v_and_b32 v{T}, 15, v0\n  v_lshrrev_b32 v{T+1}, 4, v0\n  s_lshl_b32 s37, s{sW}, 11\n  s_add_u32 s37, s37, {LDS_O}")
        a(f"  v_cmp_gt_u32 s[62:63], 4, v{T}\n  v_lshl_add_u32 v{T+2}, v{T}, 9, s37\n  v_lshl_add_u32 v{T+3}, v{T+1}, 6, v{T+2}\n  v_lshl_add_u32 v{T+2}, v{T+1}, 5, v{T+2}")
        a("  s_nop 2\n  s_mov_b64 exec, s[62:63]")
        for x in range(8):
            for r in range(4): a(f"  ds_write_b32 v{T+2}, v{O+4*x+r} offset:{(x>>1)*128 + (2*r + (x&1))*4}")
        for x in range(8):
            for r in range(4): a(f"  ds_read_b32 v{O+4*x+r}, v{T+3} offset:{(x>>2)*256 + (4*r + (x&3))*4}")
        a("  s_mov_b64 exec, -1")
        loopV("L_loopW", vsw, NSTEP - D)
    else:
        loopV("L_loopV", 0, NSTEP - D)
    assert D <= 4
    XS = T
    for t in range(D): ldsV(t, XS+2*t, XS+2*t+1, QP+8+2*t if t < 1 or True else 0)
    a("  s_waitcnt lgkmcnt(0)")
    PT = [S, S+2, P, VZr]
    for t in range(D): soft(XS+2*t, XS+2*t+1, PT[t])
    allreduce(vL, "v_add_f32")
    a(f"  v_and_b32 v{T}, 15, v0\n  v_lshrrev_b32 v{T+1}, 4, v0\n  s_lshl_b32 s37, s{sW}, 5\n  s_add_u32 s37, s37, {LDS_ML}\n  v_lshl_add_u32 v{T+3}, v{T}, 3, s37")
    a(f"  s_lshl_b32 s37, s{sW}, 11\n  s_add_u32 s37, s37, {LDS_O}")
    a(f"  v_lshlrev_b32 v{T+2}, 9, v{T}\n  v_lshl_add_u32 v{T+2}, v{T+1}, {5 if vsw == 32 else 6}, v{T+2}\n  v_add_u32 v{T+2}, s37, v{T+2}")
    a(f"  v_cmp_gt_u32 s[62:63], 4, v{T}\n  v_lshlrev_b32 v{T+6}, 4, v0\n  v_lshlrev_b32 v{T+7}, 3, v0")
    a(f"  s_mov_b64 exec, s[62:63]\n  ds_write_b64 v{T+3}, {r2(vM)}\n  s_mov_b64 exec, -1")
    a(f"  v_lshlrev_b32 v{T+4}, 5, v0\n  v_lshlrev_b32 v{T+5}, 3, v{T+1}")
    for t in range(D):
        if NSTEP - D + t == max(tk, NSTEP - D):
            a(f"  s_cmp_lg_u32 s{sW}, 0\n  s_cbranch_scc1 L_noticket\n  s_atomic_add s90, s[20:21], s91 glc\nL_noticket:")
        stepV(t, t, NSTEP-D+t, False, PT[t], QP+8+2*t, False, last=(t == D-1))
    if stamps and midat == 0: a("  s_memrealtime s[84:85]")
    R = R_(0)
    a("  s_nop 7\n  s_mov_b64 exec, s[62:63]")
    if vsw == 32:
        for c in range(4):
            for r in range(4):
                for e in range(2): a(f"  v_sub_f32 v{R+8*c+2*r+e}, v{O+4*(2*c+e)+r}, v{Z}")
            a(f"  ds_write_b128 v{T+2}, {r4(R+8*c)} offset:{c*128}\n  ds_write_b128 v{T+2}, {r4(R+8*c+4)} offset:{c*128+16}")
    else:
        for hf in range(2):
            for r in range(4):
                for e in range(4): a(f"  v_sub_f32 v{R+16*hf+4*r+e}, v{O+16*hf+4*e+r}, v{Z}")
                a(f"  ds_write_b128 v{T+2}, {r4(R+16*hf+4*r)} offset:{hf*256+r*16}")
    a("  s_mov_b64 exec, -1\n  s_waitcnt lgkmcnt(0)\n  s_barrier")
    a(f"  s_cmp_lg_u32 s{sW}, 0\n  s_cbranch_scc1 L_end")
    if stamps and midat == 5: a("  s_memrealtime s[84:85]")
    ML = PK
    for w in range(4): a(f"  ds_read_b64 {r2(ML+2*w)}, v{T+5} offset:{LDS_ML+w*32}")
    for w in range(4): a(f"  ds_read_b128 {r4(R+8*w)}, v{T+4} offset:{LDS_O+w*2048}\n  ds_read_b128 {r4(R+8*w+4)}, v{T+4} offset:{LDS_O+w*2048+16}")
    a("  s_waitcnt lgkmcnt(8)")
    a(f"  v_max3_f32 v{vM}, v{ML}, v{ML+2}, v{ML+4}\n  v_max_f32 v{vM}, v{vM}, v{ML+6}")
    for w in range(4): a(f"  v_sub_f32 v{ML+2*w}, v{ML+2*w}, v{vM}")
    for w in range(4): a(f"  v_exp_f32 v{ML+2*w}, v{ML+2*w}")
    a(f"  s_nop 0\n  v_mul_f32 v{vL}, v{ML}, v{ML+1}")
    for w in range(1, 4): a(f"  v_fmac_f32 v{vL}, v{ML+2*w}, v{ML+2*w+1}")
    a("  s_waitcnt lgkmcnt(0)")
    if pk:
        for i in range(0, 8, 2): a(f"  v_pk_mul_f32 {r2(O+i)}, {r2(R+i)}, {r2(ML)} op_sel_hi:[1,0]")
        for w in range(1, 4):
            for i in range(0, 8, 2): a(f"  v_pk_fma_f32 {r2(O+i)}, {r2(R+8*w+i)}, {r2(ML+2*w)}, {r2(O+i)} op_sel_hi:[1,0,1]")
    else:
        for i in range(8): a(f"  v_mul_f32 v{O+i}, v{ML}, v{R+i}")
        for w in range(1, 4):
            for i in range(8): a(f"  v_fmac_f32 v{O+i}, v{ML+2*w}, v{R+8*w+i}")
    if stamps and midat == 6: a("  s_memrealtime s[84:85]")
    a("  s_cmp_lg_u32 s90, 0\n  s_cbranch_scc1 L_second")
    a(f"  buffer_store_dwordx4 {r4(O)}, v{T+6}, {W}, s87 offen sc0 sc1 {pnt}\n  buffer_store_dwordx4 {r4(O+4)}, v{T+6}, {W}, s87 offen offset:1024 sc0 sc1 {pnt}")
    a(f"  buffer_store_dwordx2 {r2(vM)}, v{T+7}, {W}, s87 offen offset:2048 sc0 sc1 {pnt}")
    a("  s_branch L_fin\nL_repoll:")
    partner_loads()
    a("L_second:\n  s_waitcnt vmcnt(0)")
    a(f"  v_max3_u32 v{T}, v{PB}, v{PB+1}, v{PB+2}")
    for i in (3, 5, 7): a(f"  v_max3_u32 v{T}, v{T}, v{PB+i}, v{PB+i+1}")
    a(f"  v_max_u32 v{T}, v{T}, v{PB+9}\n  v_cmp_eq_u32 vcc, -1, v{T}\n  s_cbranch_vccnz L_repoll")
    a(f"  v_max_f32 v{T}, v{vM}, v{PB+8}\n  v_sub_f32 v{T+1}, v{vM}, v{T}\n  v_sub_f32 v{T+2}, v{PB+8}, v{T}")
    a(f"  v_exp_f32 v{T+1}, v{T+1}\n  v_exp_f32 v{T+2}, v{T+2}\n  s_nop 0")
    a(f"  v_mul_f32 v{T+3}, v{T+1}, v{vL}\n  v_fmac_f32 v{T+3}, v{T+2}, v{PB+9}\n  v_rcp_f32 v{T+3}, v{T+3}\n  s_nop 0")
    if pk:
        a(f"  v_mul_f32 v{T}, v{T+1}, v{T+3}\n  v_mul_f32 v{T+2}, v{T+2}, v{T+3}")
        for i in range(0, 8, 2): a(f"  v_pk_mul_f32 {r2(O+i)}, {r2(O+i)}, {r2(T)} op_sel_hi:[1,0]")
        for i in range(0, 8, 2): a(f"  v_pk_fma_f32 {r2(O+i)}, {r2(PB+i)}, {r2(T+2)}, {r2(O+i)} op_sel_hi:[1,0,1]")
    else:
        a(f"  v_mul_f32 v{T+1}, v{T+1}, v{T+3}\n  v_mul_f32 v{T+2}, v{T+2}, v{T+3}")
        for i in range(8): a(f"  v_mul_f32 v{O+i}, v{O+i}, v{T+1}")
        for i in range(8): a(f"  v_fmac_f32 v{O+i}, v{PB+i}, v{T+2}")
    for i in range(4): a(f"  v_cvt_pk_bf16_f32 v{O+8+i}, v{O+2*i}, v{O+2*i+1}")
    a(f"  buffer_store_dwordx4 {r4(O+8)}, v{T+6}, s[{sOut}:{sOut+3}], s39 offen {oflags}")
    a("L_fin:")
    if stamps and midat == 7: a("  s_memrealtime s[84:85]")
    if stamps:
        a("  s_waitcnt vmcnt(0)\n  s_memrealtime s[80:81]\n  s_getreg_b32 s82, hwreg(HW_REG_XCC_ID)\n  s_waitcnt lgkmcnt(0)")
        a(f"  s_lshl_b32 s32, s83, 4\n  s_add_u32 s32, s32, 0x100000\n  v_mov_b32 v{O}, s70\n  v_mov_b32 v{O+1}, s80\n  v_mov_b32 v{O+2}, s82\n  v_mov_b32 v{O+3}, s84")
        a(f"  s_mov_b64 exec, 1\n  buffer_store_dwordx4 {r4(O)}, off, {W}, s32")
    a("L_end:\n  s_endpgm")
    a('.section .rodata,"a"\n.p2align 6')
    a(f".amdhsa_kernel {name}\n  .amdhsa_next_free_vgpr {nv}\n  .amdhsa_next_free_sgpr 96\n  .amdhsa_accum_offset {min(256,(nv+3)//4*4)}\n  .amdhsa_group_segment_fixed_size 0\n  .amdhsa_kernarg_size 80\n  .amdhsa_user_sgpr_count 2\n  .amdhsa_user_sgpr_kernarg_segment_ptr 1\n  .amdhsa_system_sgpr_workgroup_id_x 1\n.end_amdhsa_kernel")
    return "\n".join(L) + "\n"
if __name__ == "__main__":
    kw = json.loads(sys.argv[2]) if len(sys.argv) > 2 else {}
    open(sys.argv[1], "w").write(gen(**kw))
```
